```python
import torch

def _softmax(x, axis=-1):
    return torch.softmax(x, dim=axis)
def _gelu(x):
    return torch.nn.functional.gelu(x, approximate="tanh")
def _silu(x):
    return torch.nn.functional.silu(x)
def _sigmoid(x):
    return torch.sigmoid(x)
def _layernorm(x, axis=-1, eps=1e-5):
    m = x.mean(dim=axis, keepdim=True)
    v = x.var(dim=axis, keepdim=True, unbiased=False)
    return (x - m) / torch.sqrt(v + eps)
def _scatter_add(tgt, idx, src, axis=0):
    return tgt.clone().index_add_(axis, idx, src)
def _segment_sum(src, seg, n):
    out = torch.zeros((n,) + src.shape[1:], dtype=src.dtype)
    return out.index_add_(0, seg, src)
def _pad(x, pw):
    flat = tuple(v for pair in reversed(pw) for v in pair)
    return torch.nn.functional.pad(x, flat)

kernel_name = 'concat_heads__gqa_block_cached__mha_block_cached__near_ridge'

def setup_inputs():

    _w = (lambda a: (lambda t: t.to(torch.bfloat16) if t.is_floating_point() else t)(torch.as_tensor(a)))
    def _A_setup():
        B, Sq, D = 16, 48, 448
        Hq, Hkv, Sk, Dh = 16, 8, 512, 256
        assert Hq % Hkv == 0, (Hq, Hkv)
        return {
            "x": _w((lambda *s: torch.randn(*s, dtype=torch.bfloat16) * 0.8)(B, Sq, D)),
            "k_cache": _w((lambda *s: torch.randn(*s, dtype=torch.bfloat16) * 0.8)(B, Hkv, Sk, Dh)),
            "v_cache": _w((lambda *s: torch.randn(*s, dtype=torch.bfloat16) * 0.05)(B, Hkv, Sk, Dh)),
            "wq": _w((lambda *s: torch.randn(*s, dtype=torch.bfloat16) * 0.8)(D, Hq * Dh) * (D ** -0.5)),
            "wo": _w((lambda *s: torch.randn(*s, dtype=torch.bfloat16) * 0.05)(Hq * Dh, D) * ((Hq * Dh) ** -0.5)),
        }
    _A_in = _A_setup()

    def _B_setup():
        B, Sq, D = 16, 48, 448
        H, Sk, Dh = 16, 512, 256
        return {
            "x": _w((lambda *s: torch.randn(*s, dtype=torch.bfloat16) * 0.8)(B, Sq, D)),
            "k_cache": _w((lambda *s: torch.randn(*s, dtype=torch.bfloat16) * 0.8)(B, H, Sk, Dh)),
            "v_cache": _w((lambda *s: torch.randn(*s, dtype=torch.bfloat16) * 0.05)(B, H, Sk, Dh)),
            "wq": _w((lambda *s: torch.randn(*s, dtype=torch.bfloat16) * 0.8)(D, H * Dh) * (D ** -0.5)),
            "wo": _w((lambda *s: torch.randn(*s, dtype=torch.bfloat16) * 0.05)(H * Dh, D) * ((H * Dh) ** -0.5)),
        }
    _B_in = _B_setup()

    return {
        "A_x": _A_in["x"],
        "A_k_cache": _A_in["k_cache"],
        "A_v_cache": _A_in["v_cache"],
        "A_wq": _A_in["wq"],
        "A_wo": _A_in["wo"],
        "B_x": _B_in["x"],
        "B_k_cache": _B_in["k_cache"],
        "B_v_cache": _B_in["v_cache"],
        "B_wq": _B_in["wq"],
        "B_wo": _B_in["wo"],
    }

def reference(A_x, A_k_cache, A_v_cache, A_wq, A_wo, B_x, B_k_cache, B_v_cache, B_wq, B_wo):
    def _A_ref(x, k_cache, v_cache, wq, wo):
        B, Sq, D = x.shape
        Hq, Dh = 16, 256
        Hkv = k_cache.shape[1]
        rep = Hq // Hkv
        q = (lambda x, *d: x.permute(*d))((x @ wq).reshape(B, Sq, Hq, Dh), 0, 2, 1, 3)
        k = (lambda x, n, axis: torch.repeat_interleave(x, n, dim=axis))(k_cache, rep, axis=1)
        v = (lambda x, n, axis: torch.repeat_interleave(x, n, dim=axis))(v_cache, rep, axis=1)
        scores = torch.einsum("bhqd,bhkd->bhqk", q, k) * (Dh ** -0.5)
        p = _softmax(scores, axis=-1)
        o = torch.einsum("bhqk,bhkd->bhqd", p, v)
        return (lambda x, *d: x.permute(*d))(o, 0, 2, 1, 3).reshape(B, Sq, Hq * Dh) @ wo

    def _B_ref(x, k_cache, v_cache, wq, wo):
        B, Sq, D = x.shape
        H, Dh = 16, 256
        q = (lambda x, *d: x.permute(*d))((x @ wq).reshape(B, Sq, H, Dh), 0, 2, 1, 3)
        scores = torch.einsum("bhqd,bhkd->bhqk", q, k_cache) * (Dh ** -0.5)
        p = _softmax(scores, axis=-1)
        o = torch.einsum("bhqk,bhkd->bhqd", p, v_cache)
        return (lambda x, *d: x.permute(*d))(o, 0, 2, 1, 3).reshape(B, Sq, H * Dh) @ wo

    a = _A_ref(A_x, A_k_cache, A_v_cache, A_wq, A_wo)
    b = _B_ref(B_x, B_k_cache, B_v_cache, B_wq, B_wo)
    return torch.concatenate([a, b], axis=-1)
```

```python
import sys
opt = dict(a.split("=") for a in sys.argv[1:])
STAMP = opt.get("stamp", "0") == "1"
JX = int(opt.get("jx", "0"))
STPOL = opt.get("stpol", "")
NAME = "concat_heads__gqa_block_cached__mha_block_cached__near_ridge"
K1 = NAME + "_kernel"
K2 = "reduce_heads_kernel"

L = []
def E(s): L.append("  " + s)
def LAB(s): L.append(s + ":")
def C(s): L.append("  ; " + s)

RING = 24576
EX = 98304
STM = 147456
STS = 148992
LDS_TOTAL = 150528
PART = 43008

sJ, sB, sISB = 3, 5, 6
SRD_K, SRD_V, SRD_WQ, SRD_WO, SRD_X, SRD_WS = 8, 12, 16, 20, 24, 28
sW, sRB = 32, 33
sKO, sVO, sWQO, sWOO, sWOE = 34, 35, 36, 37, 38
sT0, sT1, sT2 = 39, 40, 41
sXC = 42
sOC = 43
sPASS = 44
sCEXP = 45
sU2 = 46
def srd(b): return f"s[{b}:{b+3}]"

vL, vC, vG, vFR = 0, 1, 2, 3
vVP, vVR, vWOR, vSTW, vSTR, vDYN = 4, 8, 12, 13, 14, 15
vKP, vKR, vWQP, vWQR, vWOP, vXP, vXR, vQW = 16, 20, 24, 28, 36, 40, 41, 42
vT = 43
FA = [48, 80]
def vr(b, n=4): return f"v[{b}:{b+n-1}]"
def ar(b, n=4): return f"a[{b}:{b+n-1}]"

nstamp = [0]
def stamp(path_tag=None):
    if not STAMP: return
    k = nstamp[0]; nstamp[0] += 1
    assert k < 20
    E(f"s_memtime s[{60+2*k}:{61+2*k}]")

def mfma(d, a, b, c):
    return f"v_mfma_f32_16x16x32_bf16 {d}, {a}, {b}, {c}"

def issue_items(kind, slot, parity=0):
    if kind is None: return []
    P, S, off, delta, nt = {
        "K": (vKP, SRD_K, sKO, 256, " nt"),
        "V": (vVP, SRD_V, sVO, 16384, " nt"),
        "WQ": (vWQP, SRD_WQ, sWQO, 131072, ""),
        "WO": (vWOP, SRD_WO, sWOO, 14336, ""),
    }[kind]
    items = []
    for u in range(2):
        for jj in range(4):
            it = []
            if jj == 0:
                it.append(f"s_add_u32 m0, s{sRB}, {slot*8192 + u*4096}")
                if u == 0: it.append(f"s_add_u32 s{sU2}, s{off}, {delta}")
                else: it.append("s_nop 0")
            so = off if u == 0 else sU2
            it.append(f"buffer_load_dwordx4 v{P+jj}, {srd(S)}, s{so} offen offset:{1024*jj}{nt} lds")
            if u == 1 and jj == 3:
                if kind == "K":
                    it.append(f"s_add_u32 s{off}, s{off}, {8192 if parity == 0 else 65536-8192}")
                elif kind == "V":
                    it.append(f"s_add_u32 s{off}, s{off}, 32768")
                elif kind == "WQ":
                    it.append(f"s_add_u32 s{off}, s{off}, 262144")
                    it.append(f"s_cmp_eq_u32 s{off}, {14*262144}")
                    it.append(f"s_cselect_b32 s{off}, 0, s{off}")
                elif kind == "WO":
                    it.append(f"s_add_u32 s{off}, s{off}, 28672")
                    it.append(f"s_cmp_eq_u32 s{off}, s{sWOE}")
                    it.append(f"s_cselect_b32 s{sT0}, 229376, 0")
                    it.append(f"s_sub_u32 s{off}, s{off}, s{sT0}")
                    if parity == 1:
                        it.append(f"s_add_u32 s{off}, s{off}, 229376")
                        it.append(f"s_add_u32 s{sWOE}, s{sWOE}, 229376")
            items.append(it)
    return items

def merge(ms, reads, dmas):
    others = []
    ri = di = 0
    while ri < len(reads) or di < len(dmas):
        for _ in range(3):
            if ri < len(reads): others.append(reads[ri]); ri += 1
        if di < len(dmas): others.append(dmas[di]); di += 1
    n, m = len(ms), len(others)
    if n == 0:
        for it in others:
            for x in it: E(x)
        return
    k = 0
    for i, mm in enumerate(ms):
        E(mm)
        tgt = ((i + 1) * m + n - 1) // n if n >= m else ((i + 1) * m) // n
        tgt = min(m, max(tgt, ((i + 1) * m * 8) // (n * 7)))
        while k < tgt:
            for x in others[k]: E(x)
            k += 1
    while k < m:
        for x in others[k]: E(x)
        k += 1

class Ring:
    def __init__(self): self.n = 0
ring = Ring()

def phase(T, reads_fn, mfma_fn, issue_fn, pre_read=None, between=None, last_wait0=False):
    for n in range(T + 1):
        if between and n in between: between[n]()
        ms = mfma_fn(n - 1, (n - 1) & 1) if n >= 1 else []
        if n < T:
            g = ring.n; ring.n += 1
            E(f"s_waitcnt vmcnt({0 if (last_wait0 and n == T-1) else 8})")
            if n == 0 and pre_read: pre_read()
            rd = reads_fn(n, g % 3, n & 1)
            kind, par = issue_fn(n)
            dm = issue_items(kind, (g + 2) % 3, par)
            merge(ms, rd, dm)
            E("s_waitcnt lgkmcnt(0)")
        else:
            merge(ms, [], [])

def reads_K(dst_fn):
    def f(n, slot, st):
        return [[f"ds_read_b128 {dst_fn(n, st, 4*u+s)}, v{vKR+s} offset:{slot*8192+u*4096}"] for u in range(2) for s in range(4)]
    return f

def reads_WQ(FB):
    def f(n, slot, st):
        it = [[f"v_add_u32 v{vDYN}, s{sXC}, v{vXR}",
               f"s_add_u32 s{sXC}, s{sXC}, 3072", f"s_cmp_eq_u32 s{sXC}, {14*3072}", f"s_cselect_b32 s{sXC}, 0, s{sXC}",
               f"ds_read_b128 {vr(FB[st])}, v{vDYN} offset:0"]]
        for e in range(8):
            for hf in range(2):
                it.append([f"ds_read_b64_tr_b16 {vr(FA[st]+4*e+2*hf, 2)}, v{vWQR+e} offset:{slot*8192+hf*1024}"])
            if e < 2:
                it.append([f"ds_read_b128 {vr(FB[st]+4*(e+1))}, v{vDYN} offset:{1024*(e+1)}"])
        return it
    return f

def reads_V(NQ, FB):
    def f(n, slot, st):
        it = []
        nn = n if NQ == 3 else n % 4
        for uu in range(2):
            for t in range(NQ):
                it.append([f"ds_read_b128 {vr(FB[st]+4*(uu*NQ+t))}, v{vFR} offset:{((2*nn+uu)*NQ+t)*1024}"])
            for e in range(4):
                for hf in range(2):
                    it.append([f"ds_read_b64_tr_b16 {vr(FA[st]+4*(uu*4+e)+2*hf, 2)}, v{vVR+e} offset:{slot*8192+uu*4096+hf*2048}"])
        return it
    return f

def reads_WO(FB, headfn):
    def f(n, slot, st):
        hb = headfn(n) * 24576
        it = [[f"v_add_u32 v{vDYN}, s{sOC}, v{vFR}",
               f"s_add_u32 s{sOC}, s{sOC}, 3072", f"s_cmp_eq_u32 s{sOC}, {8*3072}", f"s_cselect_b32 s{sOC}, 0, s{sOC}",
               f"ds_read_b128 {vr(FB[st])}, v{vDYN} offset:{hb}"]]
        for e in range(7):
            for hf in range(2):
                it.append([f"ds_read_b64_tr_b16 {vr(FA[st]+4*e+2*hf, 2)}, v{vWOR} offset:{slot*8192+hf*4096+e*32}"])
            if e < 2:
                it.append([f"ds_read_b128 {vr(FB[st]+4*(e+1))}, v{vDYN} offset:{hb+1024*(e+1)}"])
        return it
    return f

def setup_WOP():
    C("WO dma pattern: q=64jj+l ; row=q/14, cc=q%14 ; row*896 + w*224 + cc*16 - 1024jj ; q>=224 -> OOB")
    E(f"s_mul_i32 s{sT0}, s{sW}, 224")
    E(f"s_movk_i32 s{sT1}, 4682")
    E(f"s_mov_b32 s{sT2}, 0x40000000")
    for jj in range(4):
        q, row, t = vT, vT + 1, vT + 2
        E(f"v_add_u32 v{q}, {64*jj}, v{vL}")
        E(f"v_mul_u32_u24 v{row}, s{sT1}, v{q}")
        E(f"v_lshrrev_b32 v{row}, 16, v{row}")
        E(f"v_mul_u32_u24 v{t}, 14, v{row}")
        E(f"v_sub_u32 v{t}, v{q}, v{t}")
        E(f"v_lshlrev_b32 v{t}, 4, v{t}")
        E(f"v_mul_u32_u24 v{row}, 896, v{row}")
        E(f"v_add3_u32 v{vWOP+jj}, v{row}, v{t}, s{sT0}")
        if jj: E(f"v_subrev_u32 v{vWOP+jj}, {1024*jj}, v{vWOP+jj}")
    E(f"v_mov_b32 v{vT}, s{sT2}")
    E(f"v_cmp_gt_u32 vcc, 32, v{vL}")
    E("s_nop 1")
    E(f"v_cndmask_b32 v{vWOP+3}, v{vT}, v{vWOP+3}, vcc")

def setup():
    E("s_cmp_ge_u32 s2, 256")
    E("s_cbranch_scc1 L_end")
    stamp()
    E(f"s_and_b32 s{sJ}, s2, 7")
    E("s_lshr_b32 s4, s2, 3")
    E(f"s_and_b32 s{sB}, s4, 15")
    E(f"s_lshr_b32 s{sISB}, s4, 4")
    if JX:
        E(f"s_mul_i32 s7, s{sISB}, {JX}")
        E(f"s_xor_b32 s{sJ}, s{sJ}, s7")
    E(f"s_xor_b32 s{sISB}, s{sISB}, 1")
    E(f"s_mul_i32 s7, s{sISB}, 40")
    E("s_load_dwordx2 s[58:59], s[0:1], 96")
    E("s_add_u32 s0, s0, s7")
    E("s_addc_u32 s1, s1, 0")
    E("s_load_dwordx8 s[48:55], s[0:1], 0")
    E("s_load_dwordx2 s[56:57], s[0:1], 32")
    E(f"v_lshrrev_b32 v{vT}, 6, v0")
    E(f"v_and_b32 v{vL}, 63, v0")
    E(f"v_readfirstlane_b32 s{sW}, v{vT}")
    E(f"v_and_b32 v{vC}, 15, v{vL}")
    E(f"v_lshrrev_b32 v{vG}, 4, v{vL}")
    E(f"s_mul_i32 s{sRB}, s{sW}, {RING}")
    t0, t1, t2 = vT, vT + 1, vT + 2
    C("X dma pattern: i=l>>2, p=l&3, g'=p^((i>>3)<<1): i*896+g'*16")
    E(f"v_lshrrev_b32 v{t0}, 2, v{vL}")
    E(f"v_lshrrev_b32 v{t1}, 5, v{vL}")
    E(f"v_lshlrev_b32 v{t1}, 1, v{t1}")
    E(f"v_and_b32 v{t2}, 3, v{vL}")
    E(f"v_xor_b32 v{t1}, v{t1}, v{t2}")
    E(f"v_lshlrev_b32 v{t1}, 4, v{t1}")
    E(f"v_mul_u32_u24 v{t0}, 896, v{t0}")
    E(f"v_add_u32 v{vXP}, v{t0}, v{t1}")
    C("K dma pattern: row=4jj+g, chunk=c^row: row*512+chunk*16-1024jj")
    for jj in range(4):
        E(f"v_add_u32 v{t0}, {4*jj}, v{vG}")
        E(f"v_xor_b32 v{t1}, v{t0}, v{vC}")
        E(f"v_lshlrev_b32 v{t1}, 4, v{t1}")
        E(f"v_lshl_add_u32 v{vKP+jj}, v{t0}, 9, v{t1}")
        if jj: E(f"v_subrev_u32 v{vKP+jj}, {1024*jj}, v{vKP+jj}")
    C("WQ dma pattern: row=4jj+g, h=g|((jj>>1)<<2), chunk=c^(h<<1): row*8192+w*256+chunk*16-1024jj")
    E(f"s_lshl_b32 s{sT0}, s{sW}, 8")
    for jj in range(4):
        E(f"v_add_u32 v{t0}, {4*jj}, v{vG}")
        E(f"v_lshlrev_b32 v{t1}, 1, v{vG}")
        if jj >> 1: E(f"v_or_b32 v{t1}, 8, v{t1}")
        E(f"v_xor_b32 v{t1}, v{t1}, v{vC}")
        E(f"v_lshlrev_b32 v{t1}, 4, v{t1}")
        E(f"v_lshl_add_u32 v{t0}, v{t0}, 13, v{t1}")
        E(f"v_add_u32 v{vWQP+jj}, s{sT0}, v{t0}")
        if jj: E(f"v_subrev_u32 v{vWQP+jj}, {1024*jj}, v{vWQP+jj}")
    E("s_waitcnt lgkmcnt(0)")
    C("SRDs")
    E(f"s_lshl_b32 s{sT0}, s{sB}, 3")
    E(f"s_add_u32 s{sT0}, s{sT0}, s{sJ}")
    E(f"s_add_u32 s{sT1}, s{sISB}, 18")
    E(f"s_lshl_b32 s{sT2}, s{sT0}, s{sT1}")
    E(f"s_add_u32 s{SRD_K}, s50, s{sT2}")
    E(f"s_addc_u32 s{SRD_K+1}, s51, 0")
    E(f"s_lshl_b32 s{SRD_K+2}, 1, s{sT1}")
    E(f"s_mov_b32 s{SRD_K+3}, 0x20000")
    E(f"s_add_u32 s{SRD_V}, s52, s{sT2}")
    E(f"s_addc_u32 s{SRD_V+1}, s53, 0")
    E(f"s_lshl_b32 s{SRD_V+2}, 1, s{sT1}")
    E(f"s_mov_b32 s{SRD_V+3}, 0x20000")
    E(f"s_mul_i32 s{sT2}, s{sB}, {PART}")
    E(f"s_add_u32 s{SRD_X}, s48, s{sT2}")
    E(f"s_addc_u32 s{SRD_X+1}, s49, 0")
    E(f"s_mov_b32 s{SRD_X+2}, {PART}")
    E(f"s_mov_b32 s{SRD_X+3}, 0x20000")
    E(f"s_lshl_b32 s{sT2}, s{sJ}, 10")
    E(f"s_add_u32 s{SRD_WQ}, s54, s{sT2}")
    E(f"s_addc_u32 s{SRD_WQ+1}, s55, 0")
    E(f"s_sub_u32 s{SRD_WQ+2}, 3670016, s{sT2}")
    E(f"s_mov_b32 s{SRD_WQ+3}, 0x20000")
    E(f"s_mul_i32 s{sT2}, s{sJ}, 458752")
    E(f"s_add_u32 s{SRD_WO}, s56, s{sT2}")
    E(f"s_addc_u32 s{SRD_WO+1}, s57, 0")
    E(f"s_mov_b32 s{SRD_WO+2}, 458752")
    E(f"s_mov_b32 s{SRD_WO+3}, 0x20000")
    C("partial: index (isB*16+b)*8+j")
    E(f"s_lshl_b32 s{sT1}, s{sISB}, 7")
    E(f"s_add_u32 s{sT0}, s{sT0}, s{sT1}")
    E(f"s_mul_i32 s{sT2}, s{sT0}, {PART}")
    E(f"s_add_u32 s{SRD_WS}, s58, s{sT2}")
    E(f"s_addc_u32 s{SRD_WS+1}, s59, 0")
    E(f"s_mov_b32 s{SRD_WS+2}, {PART}")
    E(f"s_mov_b32 s{SRD_WS+3}, 0x20000")
    C("stream offsets")
    E(f"s_lshl_b32 s{sKO}, s{sW}, 14")
    E(f"s_mov_b32 s{sVO}, 0")
    E(f"s_cmp_ge_u32 s{sB}, 14")
    E(f"s_cselect_b32 s{sT0}, 14, 0")
    E(f"s_sub_u32 s{sT0}, s{sB}, s{sT0}")
    E(f"s_lshl_b32 s{sWQO}, s{sT0}, 18")
    E(f"s_mul_i32 s{sXC}, s{sT0}, 3072")
    E(f"s_and_b32 s{sT0}, s{sB}, 7")
    E(f"s_mul_i32 s{sWOO}, s{sT0}, 28672")
    E(f"s_mul_i32 s{sOC}, s{sT0}, 3072")
    E(f"s_mov_b32 s{sWOE}, 229376")
    E(f"s_mov_b32 s{sCEXP}, 0x3db8aa3b")

def issue_X():
    C("x -> EX : blocks [s][t]")
    for a in range(4):
        E(f"s_add_u32 s{sT0}, s{sW}, {4*a}")
        E(f"s_mul_i32 s{sT1}, s{sT0}, 3072")
        E(f"s_lshl_b32 s{sT0}, s{sT0}, 6")
        for t in range(3):
            E(f"s_add_u32 m0, s{sT1}, {EX + 1024*t}")
            E(f"s_add_u32 s{sT2}, s{sT0}, {14336*t}")
            E(f"buffer_load_dwordx4 v{vXP}, {srd(SRD_X)}, s{sT2} offen lds")

def setup2():
    t0, t1, t2 = vT, vT + 1, vT + 2
    r, cc = vT + 3, vT + 4
    E(f"v_lshlrev_b32 v{vFR}, 4, v{vL}")
    E(f"v_add_u32 v{vFR}, {EX}, v{vFR}")
    C("V dma pattern: row=8jj+(l>>3), chunk=(l&7)^(2g): row*512+w*128+chunk*16-1024jj")
    E(f"s_lshl_b32 s{sT0}, s{sW}, 7")
    E(f"v_lshrrev_b32 v{t0}, 3, v{vL}")
    E(f"v_and_b32 v{t1}, 7, v{vL}")
    E(f"v_lshlrev_b32 v{t2}, 1, v{vG}")
    E(f"v_xor_b32 v{t1}, v{t1}, v{t2}")
    E(f"v_lshlrev_b32 v{t1}, 4, v{t1}")
    E(f"v_lshl_add_u32 v{t0}, v{t0}, 9, v{t1}")
    E(f"v_add_u32 v{vVP}, s{sT0}, v{t0}")
    for jj in range(1, 4): E(f"v_add_u32 v{vVP+jj}, {3072*jj}, v{vVP}")
    E(f"v_lshrrev_b32 v{r}, 2, v{vC}")
    E(f"v_and_b32 v{cc}, 3, v{vC}")
    C("V read: (4g+r)*128 + (h<<5) + cc*8, h=((g&1)<<1)|(r>>1)")
    E(f"v_lshl_add_u32 v{t0}, v{vG}, 2, v{r}")
    E(f"v_lshrrev_b32 v{t1}, 1, v{t0}")
    E(f"v_and_b32 v{t1}, 3, v{t1}")
    E(f"v_lshlrev_b32 v{t1}, 5, v{t1}")
    E(f"v_lshl_add_u32 v{t1}, v{t0}, 7, v{t1}")
    E(f"v_lshl_add_u32 v{t1}, v{cc}, 3, v{t1}")
    E(f"v_add_u32 v{vVR}, s{sRB}, v{t1}")
    for e in range(1, 4): E(f"v_xor_b32 v{vVR+e}, {e<<5}, v{vVR}")
    C("WO read: (4g+r)*224 + cc*8")
    E(f"v_mul_u32_u24 v{t1}, 224, v{t0}")
    E(f"v_lshl_add_u32 v{t1}, v{cc}, 3, v{t1}")
    E(f"v_add_u32 v{vWOR}, s{sRB}, v{t1}")
    C("WQ read: (g>>1)*4096 + (8(g&1)+r)*256 + (h<<5) + cc*8, h=r|((g&1)<<2)")
    E(f"v_and_b32 v{t0}, 1, v{vG}")
    E(f"v_lshl_add_u32 v{t1}, v{t0}, 3, v{r}")
    E(f"v_lshlrev_b32 v{t1}, 8, v{t1}")
    E(f"v_lshl_add_u32 v{t2}, v{t0}, 2, v{r}")
    E(f"v_lshl_add_u32 v{t1}, v{t2}, 5, v{t1}")
    E(f"v_lshl_add_u32 v{t1}, v{cc}, 3, v{t1}")
    E(f"v_lshrrev_b32 v{t2}, 1, v{vG}")
    E(f"v_lshl_add_u32 v{t1}, v{t2}, 12, v{t1}")
    E(f"v_add_u32 v{vWQR}, s{sRB}, v{t1}")
    for e in range(1, 8): E(f"v_xor_b32 v{vWQR+e}, {e<<5}, v{vWQR}")
    C("K read: c*256 + ((g^c)<<4)")
    E(f"v_xor_b32 v{t1}, v{vG}, v{vC}")
    E(f"v_lshlrev_b32 v{t1}, 4, v{t1}")
    E(f"v_lshl_add_u32 v{t1}, v{vC}, 8, v{t1}")
    E(f"v_add_u32 v{vKR}, s{sRB}, v{t1}")
    for s in range(1, 4): E(f"v_xor_b32 v{vKR+s}, {s<<6}, v{vKR}")
    C("x read: EX + 64c + 16*(g^((c>>3)<<1))")
    E(f"v_lshrrev_b32 v{t1}, 3, v{vC}")
    E(f"v_lshlrev_b32 v{t1}, 1, v{t1}")
    E(f"v_xor_b32 v{t1}, v{t1}, v{vG}")
    E(f"v_lshlrev_b32 v{t1}, 4, v{t1}")
    E(f"v_lshl_add_u32 v{t1}, v{vC}, 6, v{t1}")
    E(f"v_add_u32 v{vXR}, {EX}, v{t1}")
    C("Q write: EX + w*12288 + 256(g>>1) + 16c + 8(g&1)")
    E(f"s_mul_i32 s{sT0}, s{sW}, 12288")
    E(f"s_add_u32 s{sT0}, s{sT0}, {EX}")
    E(f"v_lshlrev_b32 v{t1}, 8, v{t2}")
    E(f"v_lshl_add_u32 v{t1}, v{vC}, 4, v{t1}")
    E(f"v_lshl_add_u32 v{t1}, v{t0}, 3, v{t1}")
    E(f"v_add_u32 v{vQW}, s{sT0}, v{t1}")
    C("stats")
    E(f"v_lshlrev_b32 v{t1}, 4, v{vC}")
    E(f"v_add_u32 v{vSTR}, {STM}, v{t1}")
    E(f"s_lshl_b32 s{sT0}, s{sW}, 2")
    E(f"v_add_u32 v{vSTW}, s{sT0}, v{vSTR}")

def issue_now(kind, slot, par=0):
    for it in issue_items(kind, slot, par):
        for x in it: E(x)

QACC = 160
def qproj(succ):
    FB = [112, 136]
    def mf(n, st):
        out = []
        for e in range(8):
            for t in range(3):
                d = vr(QACC + (e*3+t)*4)
                out.append(mfma(d, vr(FA[st]+4*e), vr(FB[st]+4*t), "0" if n == 0 else d))
        return out
    def iss(n):
        return ("WQ", 0) if n + 2 < 14 else (succ, (n + 2 - 14) & 1)
    phase(14, reads_WQ(FB), mf, iss, pre_read=lambda: E("s_barrier"))
    E("s_nop 7")
    for e in range(8):
        for t in range(3):
            b = QACC + (e*3+t)*4
            E(f"v_cvt_pk_bf16_f32 v{b}, v{b}, v{b+1}")
            E(f"v_cvt_pk_bf16_f32 v{b+1}, v{b+2}, v{b+3}")
    E("s_barrier")
    for e in range(8):
        for t in range(3):
            b = QACC + (e*3+t)*4
            E(f"ds_write_b64 v{vQW}, {vr(b,2)} offset:{((e>>1)*3+t)*1024+(e&1)*512}")
    E("s_waitcnt lgkmcnt(0)")
    E("s_barrier")

def xlane(op, regs, tmps):
    for sw in ("v_permlane32_swap_b32", "v_permlane16_swap_b32"):
        for r, t in zip(regs, tmps): E(f"v_mov_b32 v{t}, v{r}")
        E("s_nop 1")
        for r, t in zip(regs, tmps): E(f"{sw} v{t}, v{r}")
        E("s_nop 1")
        for r, t in zip(regs, tmps): E(f"{op} v{r}, v{r}, v{t}")

def softmax(NQ, SB, TB):
    S = lambda kt, t, r: SB + (kt*NQ+t)*4 + r
    M = [TB + t for t in range(NQ)]
    T1 = [TB + NQ + t for t in range(NQ)]
    SUM = [TB + 2*NQ + t for t in range(NQ)]
    R4 = TB + 3*NQ
    R4 += (-R4) % 4
    E("s_nop 7")
    vals = [[S(kt, t, r) for kt in range(8) for r in range(4)] for t in range(NQ)]
    for t in range(NQ): E(f"v_max3_f32 v{M[t]}, v{vals[t][0]}, v{vals[t][1]}, v{vals[t][2]}")
    for i in range(3, 31, 2):
        for t in range(NQ): E(f"v_max3_f32 v{M[t]}, v{M[t]}, v{vals[t][i]}, v{vals[t][i+1]}")
    for t in range(NQ): E(f"v_max_f32 v{M[t]}, v{M[t]}, v{vals[t][31]}")
    xlane("v_max_f32", M, T1)
    for t in range(NQ): E(f"ds_write_b32 v{vSTW}, v{M[t]} offset:{t*256}")
    E("s_waitcnt lgkmcnt(0)")
    E("s_barrier")
    for t in range(NQ): E(f"ds_read_b128 {vr(R4+4*t)}, v{vSTR} offset:{t*256}")
    E("s_waitcnt lgkmcnt(0)")
    for t in range(NQ): E(f"v_max3_f32 v{M[t]}, v{R4+4*t}, v{R4+4*t+1}, v{R4+4*t+2}")
    for t in range(NQ): E(f"v_max_f32 v{M[t]}, v{M[t]}, v{R4+4*t+3}")
    for t in range(NQ): E(f"v_mul_f32 v{M[t]}, s{sCEXP}, v{M[t]}")
    for i in range(32):
        for t in range(NQ): E(f"v_fma_f32 v{vals[t][i]}, v{vals[t][i]}, s{sCEXP}, -v{M[t]}")
        for t in range(NQ): E(f"v_exp_f32 v{vals[t][i]}, v{vals[t][i]}")
        if i == 1:
            pass
        if i >= 2:
            for t in range(NQ):
                if i == 2: E(f"v_add_f32 v{SUM[t]}, v{vals[t][0]}, v{vals[t][1]}")
                else: E(f"v_add_f32 v{SUM[t]}, v{SUM[t]}, v{vals[t][i-1]}")
    E("s_nop 0")
    for t in range(NQ): E(f"v_add_f32 v{SUM[t]}, v{SUM[t]}, v{vals[t][31]}")
    xlane("v_add_f32", SUM, T1)
    for t in range(NQ): E(f"ds_write_b32 v{vSTW}, v{SUM[t]} offset:{STS-STM+t*256}")

def pack_pair(NQ, SB, u, t, dst):
    a = SB + ((2*u)*NQ+t)*4; b = SB + ((2*u+1)*NQ+t)*4
    E(f"v_cvt_pk_bf16_f32 v{dst+3}, v{b+2}, v{b+3}")
    E(f"v_cvt_pk_bf16_f32 v{dst+2}, v{b}, v{b+1}")
    E(f"v_cvt_pk_bf16_f32 v{dst}, v{a}, v{a+1}")
    E(f"v_cvt_pk_bf16_f32 v{dst+1}, v{a+2}, v{a+3}")

def o_final(NQ, OACC, TB):
    R4 = TB
    RL = [TB + 4*NQ + t for t in range(NQ)]
    W = TB + 5*NQ; W += (-W) % 4
    for t in range(NQ): E(f"ds_read_b128 {vr(R4+4*t)}, v{vSTR} offset:{STS-STM+t*256}")
    E(f"s_mul_i32 s{sT0}, s{sW}, 6144")
    E(f"v_add_u32 v{vDYN}, s{sT0}, v{vFR}")
    E("s_waitcnt lgkmcnt(0)")
    for t in range(NQ): E(f"v_add_f32 v{RL[t]}, v{R4+4*t}, v{R4+4*t+1}")
    for t in range(NQ): E(f"v_add_f32 v{R4+4*t+2}, v{R4+4*t+2}, v{R4+4*t+3}")
    for t in range(NQ): E(f"v_add_f32 v{RL[t]}, v{RL[t]}, v{R4+4*t+2}")
    for t in range(NQ): E(f"v_rcp_f32 v{RL[t]}, v{RL[t]}")
    E("s_nop 4")
    outs = []
    k = 0
    for ep in range(2):
        for t in range(NQ):
            base = W + 8*k; k += 1
            for h in range(2):
                for r in range(4):
                    E(f"v_accvgpr_read_b32 v{base+4*h+r}, a{OACC+((2*ep+h)*NQ+t)*4+r}")
            for i in range(8): E(f"v_mul_f32 v{base+i}, v{base+i}, v{RL[t]}")
            for i in range(4): E(f"v_cvt_pk_bf16_f32 v{base+i}, v{base+2*i}, v{base+2*i+1}")
            outs.append((base, ((t//3)*24 + ep*3 + (t % 3))*1024))
    E("s_barrier")
    for base, off in outs: E(f"ds_write_b128 v{vDYN}, {vr(base)} offset:{off}")
    E("s_waitcnt lgkmcnt(0)")
    E("s_barrier")

OUT = 96
def oproj(T, headfn, iss, last_wait0=False):
    FB = [112, 136]
    def mf(n, st):
        out = []
        for e in range(7):
            for t in range(3):
                d = ar(OUT + (e*3+t)*4)
                out.append(mfma(d, vr(FA[st]+4*e), vr(FB[st]+4*t), d))
        return out
    phase(T, reads_WO(FB, headfn), mf, iss, last_wait0=last_wait0)

def zero_out():
    for i in range(84): E(f"v_accvgpr_write_b32 a{OUT+i}, 0")

def store_partial():
    E("s_nop 7")
    pol = (" " + STPOL.replace("+", " ")) if STPOL else ""
    E(f"s_mul_i32 s{sT0}, s{sW}, 10752")
    E(f"v_lshlrev_b32 v{vT}, 4, v{vL}")
    E(f"v_lshlrev_b32 v{vT+1}, 3, v{vL}")
    k = 0
    B0 = 48
    for m in range(3):
        for t in range(3):
            base = B0 + 8*k
            for h in range(2):
                for r in range(4):
                    E(f"v_accvgpr_read_b32 v{base+4*h+r}, a{OUT+((2*m+h)*3+t)*4+r}")
            for i in range(4): E(f"v_cvt_pk_bf16_f32 v{base+i}, v{base+2*i}, v{base+2*i+1}")
            if k % 4 == 0 and k: E(f"s_add_u32 s{sT0}, s{sT0}, 4096")
            E(f"buffer_store_dwordx4 {vr(base)}, v{vT}, {srd(SRD_WS)}, s{sT0} offen offset:{(k%4)*1024}{pol}")
            k += 1
    for t in range(3):
        base = B0 + 8*k; k += 1
        for r in range(4): E(f"v_accvgpr_read_b32 v{base+r}, a{OUT+(18+t)*4+r}")
        for i in range(2): E(f"v_cvt_pk_bf16_f32 v{base+i}, v{base+2*i}, v{base+2*i+1}")
        E(f"buffer_store_dwordx2 {vr(base,2)}, v{vT+1}, {srd(SRD_WS)}, s{sT0} offen offset:{1024+512*t}{pol}")

def write_stamps():
    if not STAMP: return
    E("s_waitcnt vmcnt(0)")
    stamp()
    E("s_waitcnt lgkmcnt(0)")
    n = nstamp[0]
    E("s_mov_b32 s48, s58")
    E("s_mov_b32 s49, s59")
    E("s_add_u32 s48, s48, 0x4000000")
    E("s_addc_u32 s49, s49, 0")
    E("s_mov_b32 s50, 0x100000")
    E("s_mov_b32 s51, 0x20000")
    E(f"s_lshl_b32 s{sT0}, s2, 2")
    E(f"s_add_u32 s{sT0}, s{sT0}, s{sW}")
    E(f"s_lshl_b32 s{sT0}, s{sT0}, 7")
    E(f"v_mov_b32 v{vT}, 0")
    E(f"v_cmp_eq_u32 vcc, 0, v{vL}")
    E("s_and_saveexec_b64 s[52:53], vcc")
    for k in range(1, n):
        E(f"s_sub_u32 s{sT1}, s{60+2*k}, s60")
        E(f"v_mov_b32 v{vT+1}, s{sT1}")
        E(f"buffer_store_dword v{vT+1}, v{vT}, s[48:51], s{sT0} offen offset:{4*k}")
        E("s_nop 1")
    E(f"v_mov_b32 v{vT+1}, s60")
    E(f"buffer_store_dword v{vT+1}, v{vT}, s[48:51], s{sT0} offen offset:0")

def path_B():
    NQ = 3; SB = 160; FB = [112, 136]; QA, QB, OACC = 0, 96, 192
    ring.n = 0
    issue_X()
    issue_now("WQ", 0); issue_now("WQ", 1)
    setup2(); setup_WOP()
    qproj("K")
    stamp()
    for h in range(2):
        for s in range(8):
            for t in range(3):
                E(f"ds_read_b128 {ar((QA if h == 0 else QB)+(s*3+t)*4)}, v{vFR} offset:{((h*8+s)*3+t)*1024}")
            if s % 4 == 3: E("s_waitcnt lgkmcnt(0)")
    E(f"s_mov_b32 s{sPASS}, 0")
    LAB("L_Bpass")
    save = nstamp[0]
    def mfS(n, st):
        out = []
        for s in range(8):
            for t in range(3):
                d = vr(SB + (n*3+t)*4)
                out.append(mfma(d, vr(FA[st]+4*s), ar(QA+(s*3+t)*4), "0" if s == 0 else d))
        return out
    phase(8, reads_K(lambda n, st, i: vr(FA[st]+4*i)), mfS, lambda n: ("K", n & 1) if n < 6 else ("V", 0))
    stamp()
    softmax(NQ, SB, 48)
    E(f"s_mul_i32 s{sT0}, s{sW}, {NQ*1024}")
    E(f"v_add_u32 v{vDYN}, s{sT0}, v{vFR}")
    for u in range(4):
        for t in range(NQ):
            dst = SB + ((2*u+1)*NQ+t)*4
            pack_pair(NQ, SB, u, t, dst)
            E(f"ds_write_b128 v{vDYN}, {vr(dst)} offset:{(4*u*NQ+t)*1024}")
    E(f"s_cmp_eq_u32 s{sPASS}, 0")
    E("s_cbranch_scc0 L_Bnocopy")
    for i in range(96): E(f"v_accvgpr_mov_b32 a{QA+i}, a{QB+i}")
    zero_out()
    LAB("L_Bnocopy")
    E("s_waitcnt lgkmcnt(0)")
    E("s_barrier")
    stamp()
    def mfV(n, st):
        out = []
        for uu in range(2):
            for e in range(4):
                for t in range(NQ):
                    d = ar(OACC + (e*NQ+t)*4)
                    out.append(mfma(d, vr(FA[st]+4*(uu*4+e)), vr(FB[st]+4*(uu*NQ+t)), "0" if (n == 0 and uu == 0) else d))
        return out
    phase(8, reads_V(NQ, FB), mfV, lambda n: ("V", 0) if n < 6 else ("WO", 0))
    stamp()
    o_final(NQ, OACC, 160)
    stamp()
    oproj(8, lambda n: 0, lambda n: ("WO", 1 if n == 5 else 0) if n < 6 else ("K", n & 1))
    stamp()
    assert ring.n % 3 == 14 % 3
    if STAMP:
        E(f"s_cmp_eq_u32 s{sPASS}, 0")
        E("s_cbranch_scc0 L_Bnost")
        E("s_waitcnt lgkmcnt(0)")
        cnt = nstamp[0] - save
        for k in range(cnt):
            E(f"s_mov_b32 s{60+2*(nstamp[0]+k)}, s{60+2*(save+k)}")
        nstamp[0] += cnt
        LAB("L_Bnost")
    E(f"s_add_u32 s{sPASS}, s{sPASS}, 1")
    E(f"s_cmp_lt_u32 s{sPASS}, 2")
    E("s_cbranch_scc1 L_Bpass")
    store_partial()
    write_stamps()
    E("s_endpgm")

def path_A():
    NQ = 6; SB = 64; OACC = 0
    ring.n = 0
    nstamp[0] = 1
    issue_X()
    issue_now("K", 0, 0); issue_now("K", 1, 1)
    setup2()
    phase(8, reads_K(lambda n, st, i: ar((n*8+i)*4)), lambda n, st: [], lambda n: ("K", n & 1) if n < 6 else ("WQ", 0))
    stamp()
    qproj("V")
    stamp()
    QF = [16, 40]
    def rdQ(s, st):
        return [[f"ds_read_b128 {vr(QF[st]+4*tt)}, v{vFR} offset:{(((tt//3)*8+s)*3+(tt%3))*1024}"] for tt in range(6)]
    merge([], rdQ(0, 0), [])
    E("s_waitcnt lgkmcnt(0)")
    for s in range(8):
        ms = []
        for kt in range(8):
            for tt in range(6):
                d = vr(SB + (kt*6+tt)*4)
                ms.append(mfma(d, ar((kt*8+s)*4), vr(QF[s & 1]+4*tt), "0" if s == 0 else d))
        merge(ms, rdQ(s+1, (s+1) & 1) if s < 7 else [], [])
        E("s_waitcnt lgkmcnt(0)")
    stamp()
    softmax(NQ, SB, 16)
    E(f"s_mul_i32 s{sT0}, s{sW}, {NQ*1024}")
    E(f"v_add_u32 v{vDYN}, s{sT0}, v{vFR}")
    for u in range(2):
        for t in range(NQ):
            dst = SB + ((2*u+1)*NQ+t)*4
            pack_pair(NQ, SB, u, t, dst)
            E(f"ds_write_b128 v{vDYN}, {vr(dst)} offset:{(4*u*NQ+t)*1024}")
    for t in range(NQ): pack_pair(NQ, SB, 3, t, 232 + 4*t)
    for t in range(NQ): pack_pair(NQ, SB, 2, t, 208 + 4*t)
    zero_out()
    setup_WOP()
    E("s_waitcnt lgkmcnt(0)")
    E("s_barrier")
    stamp()
    FB = [112, 160]
    def mfV(n, st):
        out = []
        for uu in range(2):
            for e in range(4):
                for t in range(NQ):
                    d = ar(OACC + (e*NQ+t)*4)
                    out.append(mfma(d, vr(FA[st]+4*(uu*4+e)), vr(FB[st]+4*(uu*NQ+t)), "0" if (n == 0 and uu == 0) else d))
        return out
    def half2():
        E("s_barrier")
        for u in range(2):
            for t in range(NQ):
                E(f"ds_write_b128 v{vDYN}, {vr(208+24*u+4*t)} offset:{(4*u*NQ+t)*1024}")
        E("s_waitcnt lgkmcnt(0)")
        E("s_barrier")
    phase(8, reads_V(NQ, FB), mfV, lambda n: ("V", 0) if n < 6 else ("WO", 0), between={4: half2})
    stamp()
    o_final(NQ, OACC, 112)
    stamp()
    oproj(16, lambda n: n // 8, lambda n: ("WO", 1 if n == 5 else 0) if n < 14 else (None, 0), last_wait0=True)
    stamp()
    store_partial()
    write_stamps()
    E("s_endpgm")

def kd(name, vg, acc, sg):
    L.append(f""".section .rodata,"a"
.p2align 6
.amdhsa_kernel {name}
  .amdhsa_next_free_vgpr {vg}
  .amdhsa_next_free_sgpr {sg}
  .amdhsa_accum_offset {acc}
  .amdhsa_group_segment_fixed_size 0
  .amdhsa_kernarg_size 104
  .amdhsa_user_sgpr_count 2
  .amdhsa_user_sgpr_kernarg_segment_ptr 1
  .amdhsa_system_sgpr_workgroup_id_x 1
.end_amdhsa_kernel""")

def reduce_kernel():
    L.append(f".text\n.globl {K2}\n.p2align 8\n.type {K2},@function\n{K2}:")
    C("wg = bb*12 + item ; wave = producer wave w ; item<9: pair slot (m=item/3,t=item%3) else single (t=item-9)")
    E("s_cmp_ge_u32 s2, 384")
    E("s_cbranch_scc1 L_rend")
    E("s_load_dwordx2 s[4:5], s[0:1], 80")
    E("s_load_dwordx2 s[6:7], s[0:1], 96")
    E("s_mul_i32 s8, s2, 5462")
    E("s_lshr_b32 s8, s8, 16")
    E("s_mul_i32 s9, s8, 12")
    E("s_sub_u32 s9, s2, s9")
    E("v_lshrrev_b32 v1, 6, v0")
    E("v_and_b32 v0, 63, v0")
    E("v_readfirstlane_b32 s10, v1")
    E("v_and_b32 v1, 15, v0")
    E("v_lshrrev_b32 v2, 4, v0")
    E(f"s_mul_i32 s11, s8, {8*PART}")
    E("s_waitcnt lgkmcnt(0)")
    E("s_add_u32 s12, s6, s11")
    E("s_addc_u32 s13, s7, 0")
    E(f"s_mov_b32 s14, {8*PART}")
    E("s_mov_b32 s15, 0x20000")
    E("s_mov_b32 s16, s4")
    E("s_mov_b32 s17, s5")
    E(f"s_mov_b32 s18, {16*48*896*2}")
    E("s_mov_b32 s19, 0x20000")
    E("s_mul_i32 s20, s10, 10752")
    C("out scalar offset: b*86016 + isB*896 + w*224")
    E("s_and_b32 s21, s8, 15")
    E("s_mul_i32 s21, s21, 86016")
    E("s_lshr_b32 s22, s8, 4")
    E("s_mul_i32 s22, s22, 896")
    E("s_add_u32 s21, s21, s22")
    E("s_mul_i32 s22, s10, 224")
    E("s_add_u32 s21, s21, s22")
    E("v_mul_u32_u24 v3, 1792, v1")
    E("s_mov_b32 s30, 0xffff0000")
    E("s_cmp_ge_u32 s9, 9")
    E("s_cbranch_scc1 L_rsingle")
    def body(nd):
        for j in range(8):
            E(f"buffer_load_dwordx{nd} {vr(8+4*j, nd)}, v4, s[12:15], s20 offen")
            if j < 7: E(f"s_add_u32 s20, s20, {PART}")
        ACC = 40
        for j in range(8):
            E(f"s_waitcnt vmcnt({7-j})")
            for i in range(nd):
                if j == 0:
                    E(f"v_lshlrev_b32 v{ACC+2*i}, 16, v{8+i}")
                    E(f"v_and_b32 v{ACC+2*i+1}, s30, v{8+i}")
                else:
                    E(f"v_lshlrev_b32 v5, 16, v{8+4*j+i}")
                    E(f"v_and_b32 v6, s30, v{8+4*j+i}")
                    E(f"v_add_f32 v{ACC+2*i}, v{ACC+2*i}, v5")
                    E(f"v_add_f32 v{ACC+2*i+1}, v{ACC+2*i+1}, v6")
        for i in range(nd): E(f"v_cvt_pk_bf16_f32 v{48+i}, v{ACC+2*i}, v{ACC+2*i+1}")
    E("s_lshl_b32 s22, s9, 10")
    E("s_add_u32 s20, s20, s22")
    E("v_lshlrev_b32 v4, 4, v0")
    E("s_mul_i32 s23, s9, 86")
    E("s_lshr_b32 s23, s23, 8")
    E("s_mul_i32 s24, s23, 3")
    E("s_sub_u32 s24, s9, s24")
    E("s_lshl_b32 s23, s23, 6")
    E("s_mul_i32 s24, s24, 28672")
    E("s_add_u32 s21, s21, s23")
    E("s_add_u32 s21, s21, s24")
    E("v_and_b32 v5, 1, v2")
    E("v_lshl_add_u32 v3, v5, 5, v3")
    E("v_lshrrev_b32 v5, 1, v2")
    E("v_lshl_add_u32 v3, v5, 4, v3")
    body(4)
    E("s_nop 1")
    E("v_permlane16_swap_b32 v48, v50")
    E("v_permlane16_swap_b32 v49, v51")
    E("s_nop 1")
    E("buffer_store_dwordx4 v[48:51], v3, s[16:19], s21 offen")
    E("s_endpgm")
    LAB("L_rsingle")
    E("s_sub_u32 s24, s9, 9")
    E("s_lshl_b32 s22, s24, 9")
    E("s_add_u32 s20, s20, s22")
    E("s_add_u32 s20, s20, 9216")
    E("v_lshlrev_b32 v4, 3, v0")
    E("s_mul_i32 s24, s24, 28672")
    E("s_add_u32 s21, s21, s24")
    E("s_add_u32 s21, s21, 192")
    E("v_lshl_add_u32 v3, v2, 3, v3")
    body(2)
    E("s_nop 1")
    E("buffer_store_dwordx2 v[48:49], v3, s[16:19], s21 offen")
    LAB("L_rend")
    E("s_endpgm")

def main():
    L.append(f"; fused Q-proj + attention + O-proj (per head pair) and cross-head reduction; generated by exp/gen.py")
    L.append(f"; @launch kernel={K1} grid=(256,1,1) block=(256,1,1) lds={LDS_TOTAL}")
    L.append(f"; @launch kernel={K2} grid=(384,1,1) block=(256,1,1) lds=0")
    L.append('.amdgcn_target "amdgcn-amd-amdhsa--gfx950"\n.text')
    L.append(f".globl {K1}\n.p2align 8\n.type {K1},@function\n{K1}:")
    setup()
    E(f"s_cmp_eq_u32 s{sISB}, 0")
    E("s_cbranch_scc1 L_pathA")
    path_B()
    LAB("L_pathA")
    path_A()
    LAB("L_end")
    E("s_endpgm")
    reduce_kernel()
    kd(K1, 512, 256, 102)
    kd(K2, 56, 56, 40)
    print("\n".join(L))
main()
```

```python
import sys
opt = dict(a.split("=") for a in sys.argv[1:])
STAMP = opt.get("stamp", "0") == "1"
JX = int(opt.get("jx", "0"))
FTPOL = " " + opt.get("ftpol", "nt").replace("+", " ")
NFQ = int(opt.get("nfq", "1"))
NFO = int(opt.get("nfo", "1"))
XPOL = " nt" if opt.get("xnt", "0") == "1" else ""
STPOL = opt.get("stpol", "")
NAME = "concat_heads__gqa_block_cached__mha_block_cached__near_ridge"
K1 = NAME + "_kernel"
K2 = "reduce_heads_kernel"

L = []
NOMFMA = opt.get("nomfma", "0") == "1"
NODS = opt.get("nods", "0") == "1"
NOSM = opt.get("nosm", "0") == "1"
def cost(s):
    if s.startswith("v_mfma"): return 16
    if s.startswith("v_exp") or s.startswith("v_rcp"): return 8
    if s.startswith("ds_write_b128"): return 16
    if s.startswith("ds_"): return 6
    if s.startswith("s_barrier"): return 60
    if s.startswith("s_waitcnt lgkm"): return 60
    if s.startswith("s_nop"): return 4 + int(s.split()[1])
    if s.startswith("s_"): return 2
    return 4
class Sched:
    def __init__(self): self.reset([])
    def reset(self, tiles):
        self.loads = []
        for t, (kind, par) in enumerate(tiles):
            for it in issue_items(kind, t % 3, par): self.loads.append((t, kind, it))
        self.ntiles = len(tiles)
        self.issued = 0; self.freed = 0; self.clock = 0; self.hold = 0
        self.space = {"K": 170, "V": 170, "WQ": 56, "WO": 56}
        self.limit = 10**9
        self.throttle = None
    def can(self):
        return self.issued < len(self.loads) and self.loads[self.issued][0] <= self.freed + 2
    def emit_one(self):
        t, kind, it = self.loads[self.issued]
        for x in it: RAW(x)
        self.issued += 1; self.clock = 0
    def tick(self, c):
        self.clock += c
        if self.hold or not self.can() or self.issued >= self.limit: return
        if self.clock >= self.space[self.loads[self.issued][1]]: self.emit_one()
    def force(self, nloads):
        nloads = min(nloads, len(self.loads))
        while self.issued < nloads:
            assert self.can(), (self.issued, self.freed)
            if self.throttle is not None and self.loads[self.issued][1] in "KV":
                RAW(f"s_waitcnt vmcnt({self.throttle})")
            self.emit_one()
    def wait_tile(self, n, la):
        if la == "W":
            nx = 8 * (n + 1)
            la = 8 if nx < len(self.loads) and self.loads[nx][1][0] == "W" else 0
        want = min(8 * (n + 1) + la, 8 * (self.freed + 3))
        self.force(want)
        N = self.issued - 8 * (n + 1)
        assert 0 <= N <= 63
        RAW(f"s_waitcnt vmcnt({N})")
def RAW(s):
    if NOMFMA and s.startswith("v_mfma"): return
    if NODS and s.startswith("ds_read"): return
    if NOSM and (s.startswith("v_exp") or s.startswith("v_fma") or s.startswith("v_max3") or s.startswith("v_cvt_pk") or s.startswith("v_accvgpr")): return
    L.append("  " + s)
def E(s):
    RAW(s)
    sch.tick(cost(s))
def EA(items):
    for x in items: RAW(x)
    sch.tick(sum(cost(x) for x in items))
def LAB(s): L.append(s + ":")
def C(s): L.append("  ; " + s)

RING = 24576
EX = 98304
STM = 147456
STS = 148992
LDS_TOTAL = 150528
PART = 43008

sJ, sB, sISB = 3, 5, 6
SRD_K, SRD_V, SRD_WQ, SRD_WO, SRD_X, SRD_WS = 8, 12, 16, 20, 24, 28
sW, sRB = 32, 33
sKO, sVO, sWQO, sWOO, sWOE = 34, 35, 36, 37, 38
sT0, sT1, sT2 = 39, 40, 41
sXC = 42
sOC = 43
sPASS = 44
sCEXP = 100
sU2 = 46
sXX = 4
sDT = 47
def srd(b): return f"s[{b}:{b+3}]"

vL, vC, vG, vFR = 0, 1, 2, 3
vVP, vVR, vWOR, vSTW, vSTR, vDYN = 4, 8, 12, 13, 14, 15
vKP, vKR, vWQP, vWQR, vWOP, vXP, vXR, vQW = 16, 20, 24, 28, 36, 40, 41, 42
vT = 43
vXP2 = 255
FA = [48, 80]
def vr(b, n=4): return f"v[{b}:{b+n-1}]"
def ar(b, n=4): return f"a[{b}:{b+n-1}]"

nstamp = [0]
FINE = opt.get("fine", "0") == "1"
FLO = int(opt.get("flo", "0"))
def fstamp():
    k = nstamp[0]; nstamp[0] += 1
    assert k < 18
    E(f"s_memrealtime s[{60+2*k}:{61+2*k}]")
def stamp(path_tag=None):
    if not STAMP: return
    if FINE and nstamp[0] > 0: return
    k = nstamp[0]; nstamp[0] += 1
    assert k < 18
    E(f"s_memrealtime s[{60+2*k}:{61+2*k}]")

def mfma(d, a, b, c):
    return f"v_mfma_f32_16x16x32_bf16 {d}, {a}, {b}, {c}"

def issue_items(kind, slot, parity=0):
    if kind is None: return []
    ft = parity >> 1; parity &= 1
    P, S, off, delta, nt = {
        "K": (vKP, SRD_K, sKO, 256, " nt"),
        "V": (vVP, SRD_V, sVO, 32768, " nt"),
        "WQ": (vWQP, SRD_WQ, sWQO, 131072, ""),
        "WO": (vWOP, SRD_WO, sWOO, 14336, ""),
    }[kind]
    if ft: nt = FTPOL
    items = []
    for u in range(2):
        for jj in range(4):
            it = []
            if jj == 0:
                it.append(f"s_add_u32 m0, s{sRB}, {slot*8192 + u*4096}")
                if u == 0: it.append(f"s_add_u32 s{sU2}, s{off}, {delta}")
                else: it.append("s_nop 0")
            so = off if u == 0 else sU2
            it.append(f"buffer_load_dwordx4 v{P+jj}, {srd(S)}, s{so} offen offset:{1024*jj}{nt} lds")
            if u == 1 and jj == 3:
                if kind == "K":
                    it.append(f"s_add_u32 s{off}, s{off}, 32768")
                elif kind == "V":
                    it.append(f"s_add_u32 s{off}, s{off}, {16384 if parity == 0 else 49152}")
                elif kind == "WQ":
                    it.append(f"s_add_u32 s{off}, s{off}, 262144")
                    it.append(f"s_cmp_eq_u32 s{off}, {14*262144}")
                    it.append(f"s_cselect_b32 s{off}, 0, s{off}")
                elif kind == "WO":
                    it.append(f"s_add_u32 s{off}, s{off}, 28672")
                    it.append(f"s_cmp_eq_u32 s{off}, s{sWOE}")
                    it.append(f"s_cselect_b32 s{sDT}, 229376, 0")
                    it.append(f"s_sub_u32 s{off}, s{off}, s{sDT}")
                    if parity == 1:
                        it.append(f"s_add_u32 s{off}, s{off}, 229376")
                        it.append(f"s_add_u32 s{sWOE}, s{sWOE}, 229376")
            items.append(it)
    return items

sch = Sched()

def spread(ms, items):
    n, m = len(ms), len(items)
    k = 0
    for i, mm in enumerate(ms):
        E(mm)
        tgt = ((i + 1) * m + n - 1) // n
        while k < min(tgt, m):
            EA(items[k]); k += 1
    while k < m:
        EA(items[k]); k += 1

class Ring:
    def __init__(self): self.n = 0
ring = Ring()

def do_read(items):
    for it in items: EA(it)

def phase(T, reads_fn, mfma_fn, cut, la=8, pre_read=None, between=None, pre=0, extra=None):
    base = ring.n - pre
    for n in range(T + 1):
        if between and n in between: between[n]()
        ms = mfma_fn(n - 1, (n - 1) & 1) if n >= 1 else []
        if n < T:
            g = base + n
            c = int(len(ms) * cut(n))
            for mm in ms[:c]: E(mm)
            ra, rb = reads_fn(n, g % 3, n & 1)
            if n >= pre:
                sch.wait_tile(g, la)
                if FINE and FLO <= g < FLO + 14: fstamp()
                if n == 0 and pre_read: pre_read()
                rd = rb[:1] + ra[:2] + rb[1:2] + ra[2:4] + rb[2:] + ra[4:]
                ring.n += 1
            else:
                rd = rb
            rest = ms[c:]
            tail = len(rest) // 6
            spread(rest[:len(rest)-tail], rd)
            for mm in rest[len(rest)-tail:]: E(mm)
            E("s_waitcnt lgkmcnt(0)")
            if n >= pre: sch.freed = g + 1
        else:
            for mm in ms: E(mm)

def early_read(reads_fn, n, la=8):
    g = ring.n
    sch.wait_tile(g, la)
    ra, rb = reads_fn(n, g % 3, n & 1)
    do_read(ra)
    ring.n += 1
    return g

def reads_K(dst_fn):
    def f(n, slot, st):
        return [[f"ds_read_b128 {dst_fn(n, st, 4*u+s)}, v{vKR+s} offset:{slot*8192+u*4096}"] for u in range(2) for s in range(4)], []
    return f

def reads_WQ(FB):
    def f(n, slot, st):
        first = [f"v_xor_b32 v{vDYN}, s{sXX}, v{vXR}", f"v_add_u32 v{vDYN}, s{sXC}, v{vDYN}",
                 f"s_mul_i32 s{sT1}, s{sXX}, 96", f"s_add_u32 s{sXC}, s{sXC}, s{sT1}", f"s_xor_b32 s{sXX}, s{sXX}, 64",
                 f"s_cmp_eq_u32 s{sXC}, {7*6144}", f"s_cselect_b32 s{sXC}, 0, s{sXC}"]
        rb = [first + [f"ds_read_b128 {vr(FB[st])}, v{vDYN} offset:0"]]
        for t in (1, 2): rb.append([f"ds_read_b128 {vr(FB[st]+4*t)}, v{vDYN} offset:{2048*t}"])
        ra = [[f"ds_read_b64_tr_b16 {vr(FA[st]+4*e+2*hf, 2)}, v{vWQR+e} offset:{slot*8192+hf*1024}"] for e in range(8) for hf in range(2)]
        return ra, rb
    return f

def reads_V(NQ, FB):
    def f(n, slot, st):
        nn = n if NQ == 3 else n % 4
        rb = [[f"ds_read_b128 {vr(FB[st]+4*(uu*NQ+t))}, v{vFR} offset:{((2*nn+uu)*NQ+t)*1024}"] for uu in range(2) for t in range(NQ)]
        ra = [[f"ds_read_b64_tr_b16 {vr(FA[st]+4*(uu*4+e)+2*hf, 2)}, v{vVR+e} offset:{slot*8192+hf*4096+uu*2048}"]
              for uu in range(2) for e in range(4) for hf in range(2)]
        return ra, rb
    return f

def reads_WO(FB, headfn):
    def f(n, slot, st):
        hb = headfn(n) * 24576
        rb = [[f"v_add_u32 v{vDYN}, s{sOC}, v{vFR}",
               f"s_add_u32 s{sOC}, s{sOC}, 3072", f"s_cmp_eq_u32 s{sOC}, {8*3072}", f"s_cselect_b32 s{sOC}, 0, s{sOC}",
               f"ds_read_b128 {vr(FB[st])}, v{vDYN} offset:{hb}"]]
        for t in (1, 2): rb.append([f"ds_read_b128 {vr(FB[st]+4*t)}, v{vDYN} offset:{hb+1024*t}"])
        ra = [[f"ds_read_b64_tr_b16 {vr(FA[st]+4*e+2*hf, 2)}, v{vWOR} offset:{slot*8192+hf*4096+e*32}"] for e in range(7) for hf in range(2)]
        return ra, rb
    return f

def setup_WOP():
    C("WO dma pattern: q=64jj+l ; row=q/14, cc=q%14 ; row*896 + w*224 + cc*16 - 1024jj ; q>=224 -> OOB")
    E(f"s_mul_i32 s{sT0}, s{sW}, 224")
    E(f"s_movk_i32 s{sT1}, 4682")
    E(f"s_mov_b32 s{sT2}, 0x40000000")
    for jj in range(4):
        q, row, t = vT, vT + 1, vT + 2
        E(f"v_add_u32 v{q}, {64*jj}, v{vL}")
        E(f"v_mul_u32_u24 v{row}, s{sT1}, v{q}")
        E(f"v_lshrrev_b32 v{row}, 16, v{row}")
        E(f"v_mul_u32_u24 v{t}, 14, v{row}")
        E(f"v_sub_u32 v{t}, v{q}, v{t}")
        E(f"v_lshlrev_b32 v{t}, 4, v{t}")
        E(f"v_mul_u32_u24 v{row}, 896, v{row}")
        E(f"v_add3_u32 v{vWOP+jj}, v{row}, v{t}, s{sT0}")
        if jj: E(f"v_subrev_u32 v{vWOP+jj}, {1024*jj}, v{vWOP+jj}")
    E(f"v_mov_b32 v{vT}, s{sT2}")
    E(f"v_cmp_gt_u32 vcc, 32, v{vL}")
    E("s_nop 1")
    E(f"v_cndmask_b32 v{vWOP+3}, v{vT}, v{vWOP+3}, vcc")

def setup():
    E("s_cmp_ge_u32 s2, 256")
    E("s_cbranch_scc1 L_end")
    stamp()
    if STAMP: E("s_memtime s[96:97]")
    E(f"s_and_b32 s{sJ}, s2, 7")
    E("s_lshr_b32 s4, s2, 3")
    E(f"s_and_b32 s{sB}, s4, 15")
    E(f"s_lshr_b32 s{sISB}, s4, 4")
    if JX:
        E(f"s_mul_i32 s7, s{sISB}, {JX}")
        E(f"s_xor_b32 s{sJ}, s{sJ}, s7")
    JM = int(opt.get("jm", "0"))
    if JM:
        E(f"s_and_b32 s7, s{sB}, {JM}")
        E(f"s_xor_b32 s{sJ}, s{sJ}, s7")
    E(f"s_xor_b32 s{sISB}, s{sISB}, 1")
    E(f"s_mul_i32 s7, s{sISB}, 40")
    E("s_load_dwordx2 s[58:59], s[0:1], 96")
    E("s_add_u32 s0, s0, s7")
    E("s_addc_u32 s1, s1, 0")
    E("s_load_dwordx8 s[48:55], s[0:1], 0")
    E("s_load_dwordx2 s[56:57], s[0:1], 32")
    E(f"v_lshrrev_b32 v{vT}, 6, v0")
    E(f"v_and_b32 v{vL}, 63, v0")
    E(f"v_readfirstlane_b32 s{sW}, v{vT}")
    E(f"v_and_b32 v{vC}, 15, v{vL}")
    E(f"v_lshrrev_b32 v{vG}, 4, v{vL}")
    E(f"s_mul_i32 s{sRB}, s{sW}, {RING}")
    t0, t1, t2 = vT, vT + 1, vT + 2
    C("X dma pattern: row=l>>3, chunk=(l&7)^(2g): row*896+chunk*16")
    E(f"v_lshrrev_b32 v{t0}, 3, v{vL}")
    E(f"v_lshlrev_b32 v{t1}, 1, v{vG}")
    E(f"v_and_b32 v{t2}, 7, v{vL}")
    E(f"v_xor_b32 v{t1}, v{t1}, v{t2}")
    E(f"v_lshlrev_b32 v{t1}, 4, v{t1}")
    E(f"v_mul_u32_u24 v{t0}, 896, v{t0}")
    E(f"v_add_u32 v{vXP}, v{t0}, v{t1}")
    E(f"v_add_u32 v{vXP2}, 6144, v{vXP}")
    C("K dma pattern: row=4jj+g, chunk=c^row: row*512+chunk*16-1024jj")
    for jj in range(4):
        E(f"v_add_u32 v{t0}, {4*jj}, v{vG}")
        E(f"v_xor_b32 v{t1}, v{t0}, v{vC}")
        E(f"v_lshlrev_b32 v{t1}, 4, v{t1}")
        E(f"v_lshl_add_u32 v{vKP+jj}, v{t0}, 9, v{t1}")
        if jj: E(f"v_subrev_u32 v{vKP+jj}, {1024*jj}, v{vKP+jj}")
    C("WQ dma pattern: row=4jj+g, h=g|((jj>>1)<<2), chunk=c^(h<<1): row*8192+w*256+chunk*16-1024jj")
    E(f"s_lshl_b32 s{sT0}, s{sW}, 8")
    for jj in range(4):
        E(f"v_add_u32 v{t0}, {4*jj}, v{vG}")
        E(f"v_lshlrev_b32 v{t1}, 1, v{vG}")
        if jj >> 1: E(f"v_or_b32 v{t1}, 8, v{t1}")
        E(f"v_xor_b32 v{t1}, v{t1}, v{vC}")
        E(f"v_lshlrev_b32 v{t1}, 4, v{t1}")
        E(f"v_lshl_add_u32 v{t0}, v{t0}, 13, v{t1}")
        E(f"v_add_u32 v{vWQP+jj}, s{sT0}, v{t0}")
        if jj: E(f"v_subrev_u32 v{vWQP+jj}, {1024*jj}, v{vWQP+jj}")
    E("s_waitcnt lgkmcnt(0)")
    C("SRDs")
    E(f"s_lshl_b32 s{sT0}, s{sB}, 3")
    E(f"s_add_u32 s{sT0}, s{sT0}, s{sJ}")
    E(f"s_add_u32 s{sT1}, s{sISB}, 18")
    E(f"s_lshl_b32 s{sT2}, s{sT0}, s{sT1}")
    E(f"s_add_u32 s{SRD_K}, s50, s{sT2}")
    E(f"s_addc_u32 s{SRD_K+1}, s51, 0")
    E(f"s_lshl_b32 s{SRD_K+2}, 1, s{sT1}")
    E(f"s_mov_b32 s{SRD_K+3}, 0x20000")
    E(f"s_add_u32 s{SRD_V}, s52, s{sT2}")
    E(f"s_addc_u32 s{SRD_V+1}, s53, 0")
    E(f"s_lshl_b32 s{SRD_V+2}, 1, s{sT1}")
    E(f"s_mov_b32 s{SRD_V+3}, 0x20000")
    E(f"s_mul_i32 s{sT2}, s{sB}, {PART}")
    E(f"s_add_u32 s{SRD_X}, s48, s{sT2}")
    E(f"s_addc_u32 s{SRD_X+1}, s49, 0")
    E(f"s_mov_b32 s{SRD_X+2}, {PART}")
    E(f"s_mov_b32 s{SRD_X+3}, 0x20000")
    E(f"s_lshl_b32 s{sT2}, s{sJ}, 10")
    E(f"s_add_u32 s{SRD_WQ}, s54, s{sT2}")
    E(f"s_addc_u32 s{SRD_WQ+1}, s55, 0")
    E(f"s_sub_u32 s{SRD_WQ+2}, 3670016, s{sT2}")
    E(f"s_mov_b32 s{SRD_WQ+3}, 0x20000")
    E(f"s_mul_i32 s{sT2}, s{sJ}, 458752")
    E(f"s_add_u32 s{SRD_WO}, s56, s{sT2}")
    E(f"s_addc_u32 s{SRD_WO+1}, s57, 0")
    E(f"s_mov_b32 s{SRD_WO+2}, 458752")
    E(f"s_mov_b32 s{SRD_WO+3}, 0x20000")
    C("partial: index (isB*16+b)*8+j")
    E(f"s_lshl_b32 s{sT1}, s{sISB}, 7")
    E(f"s_add_u32 s{sT0}, s{sT0}, s{sT1}")
    E(f"s_mul_i32 s{sT2}, s{sT0}, {PART}")
    E(f"s_add_u32 s{SRD_WS}, s58, s{sT2}")
    E(f"s_addc_u32 s{SRD_WS+1}, s59, 0")
    E(f"s_mov_b32 s{SRD_WS+2}, {PART}")
    E(f"s_mov_b32 s{SRD_WS+3}, 0x20000")
    C("stream offsets")
    E(f"s_lshl_b32 s{sKO}, s{sW}, 13")
    E(f"s_mov_b32 s{sVO}, 0")
    E(f"s_cmp_ge_u32 s{sB}, 14")
    E(f"s_cselect_b32 s{sT0}, 14, 0")
    E(f"s_sub_u32 s{sT0}, s{sB}, s{sT0}")
    E(f"s_lshl_b32 s{sWQO}, s{sT0}, 18")
    E(f"s_and_b32 s{sXX}, s{sT0}, 1")
    E(f"s_lshl_b32 s{sXX}, s{sXX}, 6")
    E(f"s_lshr_b32 s{sT0}, s{sT0}, 1")
    E(f"s_mul_i32 s{sXC}, s{sT0}, 6144")
    E(f"s_and_b32 s{sT0}, s{sB}, 7")
    E(f"s_mul_i32 s{sWOO}, s{sT0}, 28672")
    E(f"s_mul_i32 s{sOC}, s{sT0}, 3072")
    E(f"s_mov_b32 s{sWOE}, 229376")
    E(f"s_mov_b32 s{sCEXP}, 0x3db8aa3b")
    E(f"s_mov_b32 s{sCEXP+1}, 0xbdb8aa3b")

def issue_X(tag):
    C("x -> EX : blocks [sp][rg], waves 0..2 load row groups 2w, 2w+1")
    assert sch.issued % 4 == 0
    sch.hold += 1
    E(f"s_cmp_eq_u32 s{sW}, 3")
    E(f"s_cbranch_scc1 L_nox{tag}")
    E(f"s_lshl_b32 s{sT1}, s{sW}, 11")
    E(f"s_mul_i32 s{sT0}, s{sW}, 14336")
    for sp in range(7):
        E(f"s_add_u32 m0, s{sT1}, {EX + 6144*sp}")
        E(f"s_add_u32 s{sT2}, s{sT0}, {128*sp}")
        E(f"buffer_load_dwordx4 v{vXP}, {srd(SRD_X)}, s{sT2} offen{XPOL} lds")
        E(f"buffer_load_dwordx4 v{vXP2}, {srd(SRD_X)}, s{sT2} offen offset:1024{XPOL} lds")
    LAB(f"L_nox{tag}")
    sch.hold -= 1

def setup2():
    t0, t1, t2 = vT, vT + 1, vT + 2
    r, cc = vT + 3, vT + 4
    E(f"v_lshlrev_b32 v{vFR}, 4, v{vL}")
    E(f"v_add_u32 v{vFR}, {EX}, v{vFR}")
    C("V dma pattern: row=8jj+(l>>3), chunk=(l&7)^(2g): row*512+w*128+chunk*16-1024jj")
    E(f"s_lshl_b32 s{sT0}, s{sW}, 7")
    E(f"v_lshrrev_b32 v{t0}, 3, v{vL}")
    E(f"v_and_b32 v{t1}, 7, v{vL}")
    E(f"v_lshlrev_b32 v{t2}, 1, v{vG}")
    E(f"v_xor_b32 v{t1}, v{t1}, v{t2}")
    E(f"v_lshlrev_b32 v{t1}, 4, v{t1}")
    E(f"v_lshl_add_u32 v{t0}, v{t0}, 9, v{t1}")
    E(f"v_add_u32 v{vVP}, s{sT0}, v{t0}")
    for jj in range(1, 4): E(f"v_add_u32 v{vVP+jj}, {3072*jj}, v{vVP}")
    E(f"v_lshrrev_b32 v{r}, 2, v{vC}")
    E(f"v_and_b32 v{cc}, 3, v{vC}")
    C("V read: (4g+r)*128 + (h<<5) + cc*8, h=((g&1)<<1)|(r>>1)")
    E(f"v_lshl_add_u32 v{t0}, v{vG}, 2, v{r}")
    E(f"v_lshrrev_b32 v{t1}, 1, v{t0}")
    E(f"v_and_b32 v{t1}, 3, v{t1}")
    E(f"v_lshlrev_b32 v{t1}, 5, v{t1}")
    E(f"v_lshl_add_u32 v{t1}, v{t0}, 7, v{t1}")
    E(f"v_lshl_add_u32 v{t1}, v{cc}, 3, v{t1}")
    E(f"v_add_u32 v{vVR}, s{sRB}, v{t1}")
    for e in range(1, 4): E(f"v_xor_b32 v{vVR+e}, {e<<5}, v{vVR}")
    C("WO read: (4g+r)*224 + cc*8")
    E(f"v_mul_u32_u24 v{t1}, 224, v{t0}")
    E(f"v_lshl_add_u32 v{t1}, v{cc}, 3, v{t1}")
    E(f"v_add_u32 v{vWOR}, s{sRB}, v{t1}")
    C("WQ read: (g>>1)*4096 + (8(g&1)+r)*256 + (h<<5) + cc*8, h=r|((g&1)<<2)")
    E(f"v_and_b32 v{t0}, 1, v{vG}")
    E(f"v_lshl_add_u32 v{t1}, v{t0}, 3, v{r}")
    E(f"v_lshlrev_b32 v{t1}, 8, v{t1}")
    E(f"v_lshl_add_u32 v{t2}, v{t0}, 2, v{r}")
    E(f"v_lshl_add_u32 v{t1}, v{t2}, 5, v{t1}")
    E(f"v_lshl_add_u32 v{t1}, v{cc}, 3, v{t1}")
    E(f"v_lshrrev_b32 v{t2}, 1, v{vG}")
    E(f"v_lshl_add_u32 v{t1}, v{t2}, 12, v{t1}")
    E(f"v_add_u32 v{vWQR}, s{sRB}, v{t1}")
    for e in range(1, 8): E(f"v_xor_b32 v{vWQR+e}, {e<<5}, v{vWQR}")
    C("K read: c*256 + ((g^c)<<4)")
    E(f"v_xor_b32 v{t1}, v{vG}, v{vC}")
    E(f"v_lshlrev_b32 v{t1}, 4, v{t1}")
    E(f"v_lshl_add_u32 v{t1}, v{vC}, 8, v{t1}")
    E(f"v_add_u32 v{vKR}, s{sRB}, v{t1}")
    for s in range(1, 4): E(f"v_xor_b32 v{vKR+s}, {s<<6}, v{vKR}")
    C("x read: EX + (c>>3)*1024 + (c&7)*128 + ((g^(((c>>1)&3)<<1))<<4)")
    E(f"v_and_b32 v{t1}, 6, v{vC}")
    E(f"v_xor_b32 v{t1}, v{t1}, v{vG}")
    E(f"v_lshlrev_b32 v{t1}, 4, v{t1}")
    E(f"v_lshl_add_u32 v{t1}, v{vC}, 7, v{t1}")
    E(f"v_add_u32 v{vXR}, {EX}, v{t1}")
    C("Q write: EX + w*12288 + 256(g>>1) + 16c + 8(g&1)")
    E(f"s_mul_i32 s{sT0}, s{sW}, 12288")
    E(f"s_add_u32 s{sT0}, s{sT0}, {EX}")
    E(f"v_lshlrev_b32 v{t1}, 8, v{t2}")
    E(f"v_lshl_add_u32 v{t1}, v{vC}, 4, v{t1}")
    E(f"v_lshl_add_u32 v{t1}, v{t0}, 3, v{t1}")
    E(f"v_add_u32 v{vQW}, s{sT0}, v{t1}")
    C("stats")
    E(f"v_lshlrev_b32 v{t1}, 4, v{vC}")
    E(f"v_add_u32 v{vSTR}, {STM}, v{t1}")
    E(f"s_lshl_b32 s{sT0}, s{sW}, 2")
    E(f"v_add_u32 v{vSTW}, s{sT0}, v{vSTR}")

WCUT = float(opt.get("wcut", "0.05"))
LA = int(opt.get("la", "8"))
LE = int(opt.get("le", "24"))
QACC = 160
def qproj():
    FB = [112, 136]
    def mf(n, st):
        out = []
        for e in range(8):
            for t in range(3):
                d = vr(QACC + (e*3+t)*4)
                out.append(mfma(d, vr(FA[st]+4*e), vr(FB[st]+4*t), "0" if n == 0 else d))
        return out
    phase(14, reads_WQ(FB), mf, lambda n: WCUT, la="W", pre_read=lambda: E("s_barrier"))
    E("s_nop 7")
    for e in range(8):
        for t in range(3):
            b = QACC + (e*3+t)*4
            E(f"v_cvt_pk_bf16_f32 v{b}, v{b}, v{b+1}")
            E(f"v_cvt_pk_bf16_f32 v{b+1}, v{b+2}, v{b+3}")
    E("s_barrier")
    for e in range(8):
        for t in range(3):
            b = QACC + (e*3+t)*4
            E(f"ds_write_b64 v{vQW}, {vr(b,2)} offset:{((e>>1)*3+t)*1024+(e&1)*512}")
    E("s_waitcnt lgkmcnt(0)")
    E("s_barrier")

def xlane(op, regs, tmps):
    for sw in ("v_permlane32_swap_b32", "v_permlane16_swap_b32"):
        for r, t in zip(regs, tmps): E(f"v_mov_b32 v{t}, v{r}")
        E("s_nop 1")
        for r, t in zip(regs, tmps): E(f"{sw} v{t}, v{r}")
        E("s_nop 1")
        for r, t in zip(regs, tmps): E(f"{op} v{r}, v{r}, v{t}")

SMST = opt.get("smst", "0") == "1"
def softmax(NQ, SB, TB, hooks=None):
    S = lambda kt, t, r: SB + (kt*NQ+t)*4 + r
    M = [TB + 2*t for t in range(NQ)]
    T1 = [TB + 2*t + 1 for t in range(NQ)]
    SUM = [TB + 2*NQ + 2*t for t in range(NQ)]
    R4 = TB + 4*NQ
    R4 += (-R4) % 4
    E("s_nop 7")
    vals = [[S(kt, t, r) for kt in range(8) for r in range(4)] for t in range(NQ)]
    for t in range(NQ): E(f"v_max3_f32 v{M[t]}, v{vals[t][0]}, v{vals[t][1]}, v{vals[t][2]}")
    for i in range(3, 31, 2):
        for t in range(NQ): E(f"v_max3_f32 v{M[t]}, v{M[t]}, v{vals[t][i]}, v{vals[t][i+1]}")
    for t in range(NQ): E(f"v_max_f32 v{M[t]}, v{M[t]}, v{vals[t][31]}")
    xlane("v_max_f32", M, T1)
    for t in range(NQ): E(f"ds_write_b32 v{vSTW}, v{M[t]} offset:{t*256}")
    E("s_waitcnt lgkmcnt(0)")
    if SMST: fstamp()
    E("s_barrier")
    if SMST: fstamp()
    for t in range(NQ): E(f"ds_read_b128 {vr(R4+4*t)}, v{vSTR} offset:{t*256}")
    E("s_waitcnt lgkmcnt(0)")
    for t in range(NQ): E(f"v_max3_f32 v{M[t]}, v{R4+4*t}, v{R4+4*t+1}, v{R4+4*t+2}")
    for t in range(NQ): E(f"v_max_f32 v{M[t]}, v{M[t]}, v{R4+4*t+3}")
    for t in range(NQ): E(f"v_mul_f32 v{M[t]}, s{sCEXP+1}, v{M[t]}")
    def fma(i):
        for t in range(NQ):
            a = vals[t][2*i]
            E(f"v_pk_fma_f32 {vr(a,2)}, {vr(a,2)}, s[{sCEXP}:{sCEXP+1}], {vr(M[t],2)} op_sel_hi:[1,0,0]")
    fma(0)
    for i in range(16):
        if hooks and i in hooks: hooks[i]()
        if i < 15: fma(i + 1)
        for t in range(NQ):
            E(f"v_exp_f32 v{vals[t][2*i]}, v{vals[t][2*i]}")
            E(f"v_exp_f32 v{vals[t][2*i+1]}, v{vals[t][2*i+1]}")
        if i >= 2:
            for t in range(NQ):
                if i == 2: E(f"v_pk_add_f32 {vr(SUM[t],2)}, {vr(vals[t][0],2)}, {vr(vals[t][2],2)}")
                else: E(f"v_pk_add_f32 {vr(SUM[t],2)}, {vr(SUM[t],2)}, {vr(vals[t][2*i-2],2)}")
    E("s_nop 0")
    for t in range(NQ): E(f"v_pk_add_f32 {vr(SUM[t],2)}, {vr(SUM[t],2)}, {vr(vals[t][30],2)}")
    for t in range(NQ): E(f"v_add_f32 v{SUM[t]}, v{SUM[t]}, v{SUM[t]+1}")
    xlane("v_add_f32", SUM, T1)
    for t in range(NQ): E(f"ds_write_b32 v{vSTW}, v{SUM[t]} offset:{STS-STM+t*256}")
    if SMST: fstamp()

def pack_pair(NQ, SB, u, t, dst):
    a = SB + ((2*u)*NQ+t)*4; b = SB + ((2*u+1)*NQ+t)*4
    E(f"v_cvt_pk_bf16_f32 v{dst+3}, v{b+2}, v{b+3}")
    E(f"v_cvt_pk_bf16_f32 v{dst+2}, v{b}, v{b+1}")
    E(f"v_cvt_pk_bf16_f32 v{dst}, v{a}, v{a+1}")
    E(f"v_cvt_pk_bf16_f32 v{dst+1}, v{a+2}, v{a+3}")

def o_final(NQ, OACC, TB):
    R4 = TB
    RL = [TB + 4*NQ + t for t in range(NQ)]
    W = TB + 5*NQ; W += (-W) % 4
    for t in range(NQ): E(f"ds_read_b128 {vr(R4+4*t)}, v{vSTR} offset:{STS-STM+t*256}")
    E(f"s_mul_i32 s{sT0}, s{sW}, 6144")
    E(f"v_add_u32 v{vDYN}, s{sT0}, v{vFR}")
    E("s_waitcnt lgkmcnt(0)")
    for t in range(NQ): E(f"v_add_f32 v{RL[t]}, v{R4+4*t}, v{R4+4*t+1}")
    for t in range(NQ): E(f"v_add_f32 v{R4+4*t+2}, v{R4+4*t+2}, v{R4+4*t+3}")
    for t in range(NQ): E(f"v_add_f32 v{RL[t]}, v{RL[t]}, v{R4+4*t+2}")
    for t in range(NQ): E(f"v_rcp_f32 v{RL[t]}, v{RL[t]}")
    E("s_nop 4")
    outs = []
    k = 0
    for ep in range(2):
        for t in range(NQ):
            base = W + 8*k; k += 1
            for h in range(2):
                for r in range(4):
                    E(f"v_accvgpr_read_b32 v{base+4*h+r}, a{OACC+((2*ep+h)*NQ+t)*4+r}")
            for i in range(8): E(f"v_mul_f32 v{base+i}, v{base+i}, v{RL[t]}")
            for i in range(4): E(f"v_cvt_pk_bf16_f32 v{base+i}, v{base+2*i}, v{base+2*i+1}")
            outs.append((base, ((t//3)*24 + ep*3 + (t % 3))*1024))
    E("s_barrier")
    for base, off in outs: E(f"ds_write_b128 v{vDYN}, {vr(base)} offset:{off}")
    E("s_waitcnt lgkmcnt(0)")
    E("s_barrier")

OUT = 96
def oproj(T, headfn):
    FB = [112, 136]
    def mf(n, st):
        out = []
        for e in range(7):
            for t in range(3):
                d = ar(OUT + (e*3+t)*4)
                out.append(mfma(d, vr(FA[st]+4*e), vr(FB[st]+4*t), d))
        return out
    phase(T, reads_WO(FB, headfn), mf, lambda n: WCUT, la="W")

def zero_out():
    for i in range(84): E(f"v_accvgpr_write_b32 a{OUT+i}, 0")

def store_partial():
    E("s_nop 7")
    pol = (" " + STPOL.replace("+", " ")) if STPOL else ""
    E(f"s_mul_i32 s{sT0}, s{sW}, 10752")
    E(f"v_lshlrev_b32 v{vT}, 4, v{vL}")
    E(f"v_lshlrev_b32 v{vT+1}, 3, v{vL}")
    k = 0
    B0 = 48
    for m in range(3):
        for t in range(3):
            base = B0 + 8*k
            for h in range(2):
                for r in range(4):
                    E(f"v_accvgpr_read_b32 v{base+4*h+r}, a{OUT+((2*m+h)*3+t)*4+r}")
            for i in range(4): E(f"v_cvt_pk_bf16_f32 v{base+i}, v{base+2*i}, v{base+2*i+1}")
            if k % 4 == 0 and k: E(f"s_add_u32 s{sT0}, s{sT0}, 4096")
            E(f"buffer_store_dwordx4 {vr(base)}, v{vT}, {srd(SRD_WS)}, s{sT0} offen offset:{(k%4)*1024}{pol}")
            k += 1
    for t in range(3):
        base = B0 + 8*k; k += 1
        for r in range(4): E(f"v_accvgpr_read_b32 v{base+r}, a{OUT+(18+t)*4+r}")
        for i in range(2): E(f"v_cvt_pk_bf16_f32 v{base+i}, v{base+2*i}, v{base+2*i+1}")
        E(f"buffer_store_dwordx2 {vr(base,2)}, v{vT+1}, {srd(SRD_WS)}, s{sT0} offen offset:{1024+512*t}{pol}")

def write_stamps():
    if not STAMP: return
    E("s_waitcnt vmcnt(0)")
    stamp()
    E("s_memtime s[98:99]")
    E("s_waitcnt lgkmcnt(0)")
    n = nstamp[0]
    E("s_mov_b32 s48, s58")
    E("s_mov_b32 s49, s59")
    E("s_add_u32 s48, s48, 0x4000000")
    E("s_addc_u32 s49, s49, 0")
    E("s_mov_b32 s50, 0x100000")
    E("s_mov_b32 s51, 0x20000")
    E(f"s_lshl_b32 s{sT0}, s2, 2")
    E(f"s_add_u32 s{sT0}, s{sT0}, s{sW}")
    E(f"s_lshl_b32 s{sT0}, s{sT0}, 7")
    E(f"v_mov_b32 v{vT}, 0")
    E(f"v_cmp_eq_u32 vcc, 0, v{vL}")
    E("s_and_saveexec_b64 s[52:53], vcc")
    for k in range(1, n):
        E(f"s_sub_u32 s{sT1}, s{60+2*k}, s60")
        E(f"v_mov_b32 v{vT+1}, s{sT1}")
        E(f"buffer_store_dword v{vT+1}, v{vT}, s[48:51], s{sT0} offen offset:{4*k}")
        E("s_nop 1")
    E(f"v_mov_b32 v{vT+1}, s60")
    E(f"buffer_store_dword v{vT+1}, v{vT}, s[48:51], s{sT0} offen offset:0")
    E("s_sub_u32 s98, s98, s96")
    E(f"v_mov_b32 v{vT+2}, s98")
    E(f"buffer_store_dword v{vT+2}, v{vT}, s[48:51], s{sT0} offen offset:124")

def Ktiles(n): return [("K", i & 1) for i in range(n)]
def WOtiles(): return [("WO", (2 if i < NFO else 0) | (1 if i == 7 else 0)) for i in range(8)]
def WQtiles(): return [("WQ", 2 if i < NFQ else 0) for i in range(14)]

def path_B():
    NQ = 3; SB = 160; FB = [112, 136]; QA, QB, OACC = 0, 96, 192
    ring.n = 0
    sch.reset(WQtiles() + Ktiles(8) + [("V", i & 1) for i in range(8)] + WOtiles() + Ktiles(LE // 8))
    sch.space["K"] = sch.space["V"] = int(opt.get("bsp", "110"))
    sch.space["WQ"] = sch.space["WO"] = int(opt.get("wsp", "44"))
    if FINE: fstamp()
    if opt.get("xfirst", "1") == "1":
        issue_X("B"); sch.force(16)
    else:
        sch.force(8); issue_X("B"); sch.force(16)
    if FINE: fstamp()
    sch.limit = 8 * 14 + LE
    setup2(); setup_WOP()
    if opt.get("xfirst", "1") != "1":
        RAW(f"s_waitcnt vmcnt({sch.issued - 8})")
    qproj()
    stamp()
    for h in range(2):
        for s in range(8):
            for t in range(3):
                E(f"ds_read_b128 {ar((QA if h == 0 else QB)+(s*3+t)*4)}, v{vFR} offset:{((h*8+s)*3+t)*1024}")
            if s % 4 == 3: E("s_waitcnt lgkmcnt(0)")
    E(f"s_mov_b32 s{sPASS}, 0")
    sch.force(8 * 14 + LE)
    sch.limit = 10**9
    sch.clock = 0
    LAB("L_Bpass")
    save = nstamp[0]
    def mfS(n, st):
        out = []
        for s in range(8):
            for t in range(3):
                d = vr(SB + (n*3+t)*4)
                out.append(mfma(d, vr(FA[st]+4*s), ar(QA+(s*3+t)*4), "0" if s == 0 else d))
        return out
    phase(8, reads_K(lambda n, st, i: vr(FA[st]+4*i)), mfS, lambda n: 1.0, la=LA)
    stamp()
    rv = reads_V(NQ, FB)
    pend = []
    def h0(): pend.append(early_read(rv, len(pend), la=0))
    def h0b():
        E("s_waitcnt lgkmcnt(0)"); sch.freed = pend[-1] + 1
    H0 = int(opt.get("h0", "5")); H1 = int(opt.get("h1", "13"))
    hk = {H0: h0, H0 + 1: h0b}
    if H1 < 15: hk.update({H1: h0, H1 + 1: h0b})
    if SMST: fstamp()
    softmax(NQ, SB, 112, hooks=hk)
    E(f"s_mul_i32 s{sT0}, s{sW}, {NQ*1024}")
    E(f"v_add_u32 v{vDYN}, s{sT0}, v{vFR}")
    for u in range(4):
        for t in range(NQ):
            dst = SB + ((2*u+1)*NQ+t)*4
            pack_pair(NQ, SB, u, t, dst)
            E(f"ds_write_b128 v{vDYN}, {vr(dst)} offset:{(4*u*NQ+t)*1024}")
    if H1 >= 15: h0()
    h0b()
    if SMST: fstamp()
    E("s_barrier")
    if SMST: fstamp()
    stamp()
    def mfV(n, st):
        out = []
        for uu in range(2):
            for e in range(4):
                for t in range(NQ):
                    d = ar(OACC + (e*NQ+t)*4)
                    out.append(mfma(d, vr(FA[st]+4*(uu*4+e)), vr(FB[st]+4*(uu*NQ+t)), "0" if (n == 0 and uu == 0) else d))
        return out
    def copyq():
        sch.hold += 1
        E(f"s_cmp_eq_u32 s{sPASS}, 0")
        E("s_cbranch_scc0 L_Bnocopy")
        for i in range(96): RAW(f"v_accvgpr_mov_b32 a{QA+i}, a{QB+i}")
        for i in range(84): RAW(f"v_accvgpr_write_b32 a{OUT+i}, 0")
        LAB("L_Bnocopy")
        sch.hold -= 1
    phase(8, rv, mfV, lambda n: 0.0 if n <= 1 else (0.3 if n == 2 else 1.0), la=LA, pre=2, between={5: copyq})
    stamp()
    o_final(NQ, OACC, 160)
    stamp()
    oproj(8, lambda n: 0)
    stamp()
    assert ring.n == 38
    sch.force(8 * 38 + LE)
    if STAMP and not FINE:
        E(f"s_cmp_eq_u32 s{sPASS}, 0")
        E("s_cbranch_scc0 L_Bnost")
        E("s_waitcnt lgkmcnt(0)")
        cnt = nstamp[0] - save
        for k in range(cnt):
            E(f"s_mov_b32 s{60+2*(nstamp[0]+k)}, s{60+2*(save+k)}")
        nstamp[0] += cnt
        LAB("L_Bnost")
    E(f"s_add_u32 s{sPASS}, s{sPASS}, 1")
    E(f"s_cmp_lt_u32 s{sPASS}, 2")
    E("s_cbranch_scc1 L_Bpass")
    store_partial()
    write_stamps()
    E("s_endpgm")

def path_A():
    NQ = 6; SB = 64; OACC = 0
    ring.n = 0
    nstamp[0] = 1
    sch.reset(Ktiles(8) + WQtiles() + [("V", i & 1) for i in range(8)] + WOtiles() + WOtiles())
    sch.space["K"] = 170
    sch.space["V"] = int(opt.get("asp", "170"))
    sch.space["WQ"] = sch.space["WO"] = int(opt.get("wsp", "44"))
    if FINE: fstamp()
    sch.force(16)
    if FINE: fstamp()
    sch.limit = 64
    setup2()
    def xnow():
        sch.force(64); issue_X("A"); sch.limit = 10**9
    phase(8, reads_K(lambda n, st, i: ar((n*8+i)*4)), lambda n, st: [], lambda n: 1.0, la=LA, between={6: xnow})
    stamp()
    qproj()
    stamp()
    sch.limit = 8 * 30
    QF = [16, 40]
    def rdQ(s, st):
        return [[f"ds_read_b128 {vr(QF[st]+4*tt)}, v{vFR} offset:{(((tt//3)*8+s)*3+(tt%3))*1024}"] for tt in range(6)]
    do_read(rdQ(0, 0))
    E("s_waitcnt lgkmcnt(0)")
    for s in range(8):
        ms = []
        for kt in range(8):
            for tt in range(6):
                d = vr(SB + (kt*6+tt)*4)
                ms.append(mfma(d, ar((kt*8+s)*4), vr(QF[s & 1]+4*tt), "0" if s == 0 else d))
        spread(ms[:32], rdQ(s+1, (s+1) & 1) if s < 7 else [])
        for mm in ms[32:]: E(mm)
        RAW("s_waitcnt lgkmcnt(0)")
    stamp()
    softmax(NQ, SB, 16)
    E(f"s_mul_i32 s{sT0}, s{sW}, {NQ*1024}")
    E(f"v_add_u32 v{vDYN}, s{sT0}, v{vFR}")
    for u in range(2):
        for t in range(NQ):
            dst = SB + ((2*u+1)*NQ+t)*4
            pack_pair(NQ, SB, u, t, dst)
            E(f"ds_write_b128 v{vDYN}, {vr(dst)} offset:{(4*u*NQ+t)*1024}")
    for t in range(NQ): pack_pair(NQ, SB, 3, t, 232 + 4*t)
    for t in range(NQ): pack_pair(NQ, SB, 2, t, 208 + 4*t)
    zero_out()
    setup_WOP()
    sch.limit = 10**9
    E("s_waitcnt lgkmcnt(0)")
    E("s_barrier")
    stamp()
    FB = [112, 160]
    def mfV(n, st):
        out = []
        for uu in range(2):
            for e in range(4):
                for t in range(NQ):
                    d = ar(OACC + (e*NQ+t)*4)
                    out.append(mfma(d, vr(FA[st]+4*(uu*4+e)), vr(FB[st]+4*(uu*NQ+t)), "0" if (n == 0 and uu == 0) else d))
        return out
    def half2():
        E("s_barrier")
        for u in range(2):
            for t in range(NQ):
                E(f"ds_write_b128 v{vDYN}, {vr(208+24*u+4*t)} offset:{(4*u*NQ+t)*1024}")
        E("s_waitcnt lgkmcnt(0)")
        E("s_barrier")
    if "ath" in opt: sch.throttle = int(opt["ath"])
    phase(8, reads_V(NQ, FB), mfV, lambda n: 0.1 if n <= 2 else 0.6, la=int(opt.get("ala", "8")), between={4: half2})
    stamp()
    o_final(NQ, OACC, 112)
    stamp()
    oproj(16, lambda n: n // 8)
    stamp()
    store_partial()
    write_stamps()
    E("s_endpgm")
    sch.reset([])

def kd(name, vg, acc, sg):
    L.append(f""".section .rodata,"a"
.p2align 6
.amdhsa_kernel {name}
  .amdhsa_next_free_vgpr {vg}
  .amdhsa_next_free_sgpr {sg}
  .amdhsa_accum_offset {acc}
  .amdhsa_group_segment_fixed_size 0
  .amdhsa_kernarg_size 104
  .amdhsa_user_sgpr_count 2
  .amdhsa_user_sgpr_kernarg_segment_ptr 1
  .amdhsa_system_sgpr_workgroup_id_x 1
.end_amdhsa_kernel""")

def reduce_kernel():
    L.append(f".text\n.globl {K2}\n.p2align 8\n.type {K2},@function\n{K2}:")
    C("wg = bb*12 + item ; wave = producer wave w ; item<9: pair slot (m=item/3,t=item%3) else single (t=item-9)")
    E("s_cmp_ge_u32 s2, 384")
    E("s_cbranch_scc1 L_rend")
    if STAMP: E("s_memrealtime s[32:33]")
    E("s_load_dwordx2 s[4:5], s[0:1], 80")
    E("s_load_dwordx2 s[6:7], s[0:1], 96")
    E("s_mul_i32 s8, s2, 5462")
    E("s_lshr_b32 s8, s8, 16")
    E("s_mul_i32 s9, s8, 12")
    E("s_sub_u32 s9, s2, s9")
    E("v_lshrrev_b32 v1, 6, v0")
    E("v_and_b32 v0, 63, v0")
    E("v_readfirstlane_b32 s10, v1")
    E("v_and_b32 v1, 15, v0")
    E("v_lshrrev_b32 v2, 4, v0")
    E(f"s_mul_i32 s11, s8, {8*PART}")
    E("s_waitcnt lgkmcnt(0)")
    E("s_add_u32 s12, s6, s11")
    E("s_addc_u32 s13, s7, 0")
    E(f"s_mov_b32 s14, {8*PART}")
    E("s_mov_b32 s15, 0x20000")
    E("s_mov_b32 s16, s4")
    E("s_mov_b32 s17, s5")
    E(f"s_mov_b32 s18, {16*48*896*2}")
    E("s_mov_b32 s19, 0x20000")
    E("s_mul_i32 s20, s10, 10752")
    C("out scalar offset: b*86016 + isB*896 + w*224")
    E("s_and_b32 s21, s8, 15")
    E("s_mul_i32 s21, s21, 86016")
    E("s_lshr_b32 s22, s8, 4")
    E("s_mul_i32 s22, s22, 896")
    E("s_add_u32 s21, s21, s22")
    E("s_mul_i32 s22, s10, 224")
    E("s_add_u32 s21, s21, s22")
    E("v_mul_u32_u24 v3, 1792, v1")
    E("s_mov_b32 s30, 0xffff0000")
    E("s_cmp_ge_u32 s9, 9")
    E("s_cbranch_scc1 L_rsingle")
    def body(nd):
        for j in range(8):
            E(f"buffer_load_dwordx{nd} {vr(8+4*j, nd)}, v4, s[12:15], s20 offen")
            if j < 7: E(f"s_add_u32 s20, s20, {PART}")
        ACC = 40
        for j in range(8):
            E(f"s_waitcnt vmcnt({7-j})")
            for i in range(nd):
                if j == 0:
                    E(f"v_lshlrev_b32 v{ACC+2*i}, 16, v{8+i}")
                    E(f"v_and_b32 v{ACC+2*i+1}, s30, v{8+i}")
                else:
                    E(f"v_lshlrev_b32 v5, 16, v{8+4*j+i}")
                    E(f"v_and_b32 v6, s30, v{8+4*j+i}")
                    E(f"v_add_f32 v{ACC+2*i}, v{ACC+2*i}, v5")
                    E(f"v_add_f32 v{ACC+2*i+1}, v{ACC+2*i+1}, v6")
        for i in range(nd): E(f"v_cvt_pk_bf16_f32 v{48+i}, v{ACC+2*i}, v{ACC+2*i+1}")
    E("s_lshl_b32 s22, s9, 10")
    E("s_add_u32 s20, s20, s22")
    E("v_lshlrev_b32 v4, 4, v0")
    E("s_mul_i32 s23, s9, 86")
    E("s_lshr_b32 s23, s23, 8")
    E("s_mul_i32 s24, s23, 3")
    E("s_sub_u32 s24, s9, s24")
    E("s_lshl_b32 s23, s23, 6")
    E("s_mul_i32 s24, s24, 28672")
    E("s_add_u32 s21, s21, s23")
    E("s_add_u32 s21, s21, s24")
    E("v_and_b32 v5, 1, v2")
    E("v_lshl_add_u32 v3, v5, 5, v3")
    E("v_lshrrev_b32 v5, 1, v2")
    E("v_lshl_add_u32 v3, v5, 4, v3")
    body(4)
    E("s_nop 1")
    E("v_permlane16_swap_b32 v48, v50")
    E("v_permlane16_swap_b32 v49, v51")
    E("s_nop 1")
    E("buffer_store_dwordx4 v[48:51], v3, s[16:19], s21 offen")
    if STAMP:
        E("s_waitcnt vmcnt(0)")
        E("s_memrealtime s[34:35]")
        E("s_waitcnt lgkmcnt(0)")
        E("s_add_u32 s12, s6, 0x4020000")
        E("s_addc_u32 s13, s7, 0")
        E("s_mov_b32 s14, 0x100000")
        E("s_mov_b32 s15, 0x20000")
        E("s_lshl_b32 s20, s2, 2")
        E("s_add_u32 s20, s20, s10")
        E("s_lshl_b32 s20, s20, 3")
        E("v_mov_b32 v4, 0")
        E("v_mov_b32 v6, s32")
        E("v_mov_b32 v7, s34")
        E("v_cmp_eq_u32 vcc, 0, v0")
        E("s_and_saveexec_b64 s[36:37], vcc")
        E("buffer_store_dwordx2 v[6:7], v4, s[12:15], s20 offen")
    E("s_endpgm")
    LAB("L_rsingle")
    E("s_sub_u32 s24, s9, 9")
    E("s_lshl_b32 s22, s24, 9")
    E("s_add_u32 s20, s20, s22")
    E("s_add_u32 s20, s20, 9216")
    E("v_lshlrev_b32 v4, 3, v0")
    E("s_mul_i32 s24, s24, 28672")
    E("s_add_u32 s21, s21, s24")
    E("s_add_u32 s21, s21, 192")
    E("v_lshl_add_u32 v3, v2, 3, v3")
    body(2)
    E("s_nop 1")
    E("buffer_store_dwordx2 v[48:49], v3, s[16:19], s21 offen")
    LAB("L_rend")
    E("s_endpgm")

def main():
    L.append(f"; fused Q-proj + attention + O-proj (per head pair) and cross-head reduction; generated by exp/gen.py")
    MARK = opt.get("mark", "0") == "1"
    if MARK: L.append("; @launch kernel=marker_kernel grid=(1,1,1) block=(64,1,1) lds=0")
    L.append(f"; @launch kernel={K1} grid=(256,1,1) block=(256,1,1) lds={LDS_TOTAL}")
    if opt.get("nored", "0") != "1": L.append(f"; @launch kernel={K2} grid=(384,1,1) block=(256,1,1) lds=0")
    if MARK: L.append("; @launch kernel=marker_kernel grid=(1,1,1) block=(64,1,1) lds=0")
    L.append('.amdgcn_target "amdgcn-amd-amdhsa--gfx950"\n.text')
    L.append(f".globl {K1}\n.p2align 8\n.type {K1},@function\n{K1}:")
    setup()
    E(f"s_cmp_eq_u32 s{sISB}, 0")
    E("s_cbranch_scc1 L_pathA")
    path_B()
    LAB("L_pathA")
    path_A()
    LAB("L_end")
    E("s_endpgm")
    reduce_kernel()
    if MARK:
        L.append(".globl marker_kernel\n.p2align 8\n.type marker_kernel,@function\nmarker_kernel:")
        E("s_memrealtime s[8:9]")
        E("s_load_dwordx2 s[4:5], s[0:1], 88")
        E("s_waitcnt lgkmcnt(0)")
        E("s_mov_b32 s6, 256")
        E("s_mov_b32 s7, 0x20000")
        E("v_mov_b32 v1, s8")
        E("v_lshlrev_b32 v0, 2, v0")
        E("buffer_store_dword v1, v0, s[4:7], 0 offen")
        E("s_endpgm")
        kd("marker_kernel", 8, 8, 16)
    kd(K1, 512, 256, 102)
    kd(K2, 56, 56, 40)
    print("\n".join(L))
main()
```

```python
import sys
opt = dict(a.split("=") for a in sys.argv[1:])
STAMP = opt.get("stamp", "0") == "1"
JX = int(opt.get("jx", "0"))
FTPOL = " " + opt.get("ftpol", "nt").replace("+", " ")
NFQ = int(opt.get("nfq", "1"))
NFO = int(opt.get("nfo", "0" if opt.get("pfw", "2") != "0" else "1"))
XPOL = " nt" if opt.get("xnt", "0") == "1" else ""
LDPOL = " " + opt.get("ldpol", "sc1").replace("+", " ")
OUTPOL = (" " + opt["outpol"].replace("+", " ")) if "outpol" in opt else ""
ASTOP = int(opt.get("astop", "0"))
PFX = opt.get("pfx", "1") == "1"
PFW = int(opt.get("pfw", "2"))
PFPOS = int(opt.get("pfpos", "0"))
FUSE = opt.get("fuse", "1") == "1"
STPOL = opt.get("stpol", "sc1" if FUSE else "")
NAME = "concat_heads__gqa_block_cached__mha_block_cached__near_ridge"
K1 = NAME + "_kernel"
K2 = "reduce_heads_kernel"

L = []
NOMFMA = opt.get("nomfma", "0") == "1"
NODS = opt.get("nods", "0") == "1"
NOSM = opt.get("nosm", "0") == "1"
def cost(s):
    if s.startswith("v_mfma"): return 16
    if s.startswith("v_exp") or s.startswith("v_rcp"): return 8
    if s.startswith("ds_write_b128"): return 16
    if s.startswith("ds_"): return 6
    if s.startswith("s_barrier"): return 60
    if s.startswith("s_waitcnt lgkm"): return 60
    if s.startswith("s_nop"): return 4 + int(s.split()[1])
    if s.startswith("s_"): return 2
    return 4
class Sched:
    def __init__(self): self.reset([])
    def reset(self, tiles):
        self.loads = []
        for t, (kind, par) in enumerate(tiles):
            for it in issue_items(kind, t % 3, par): self.loads.append((t, kind, it))
        self.ntiles = len(tiles)
        self.issued = 0; self.freed = 0; self.clock = 0; self.hold = 0
        self.space = {"K": 170, "V": 170, "WQ": 56, "WO": 56}
        self.limit = 10**9
        self.throttle = None
    def can(self):
        return self.issued < len(self.loads) and self.loads[self.issued][0] <= self.freed + 2
    def emit_one(self):
        t, kind, it = self.loads[self.issued]
        for x in it: RAW(x)
        self.issued += 1; self.clock = 0
    def tick(self, c):
        self.clock += c
        if self.hold or not self.can() or self.issued >= self.limit: return
        if self.clock >= self.space[self.loads[self.issued][1]]: self.emit_one()
    def force(self, nloads):
        nloads = min(nloads, len(self.loads))
        while self.issued < nloads:
            assert self.can(), (self.issued, self.freed)
            if self.throttle is not None and self.loads[self.issued][1] in "KV":
                RAW(f"s_waitcnt vmcnt({self.throttle})")
            self.emit_one()
    def wait_tile(self, n, la):
        if la == "W":
            nx = 8 * (n + 1)
            la = 8 if nx < len(self.loads) and self.loads[nx][1][0] == "W" else 0
        want = min(8 * (n + 1) + la, 8 * (self.freed + 3))
        self.force(want)
        N = self.issued - 8 * (n + 1)
        assert 0 <= N <= 63
        RAW(f"s_waitcnt vmcnt({N})")
def RAW(s):
    if NOMFMA and s.startswith("v_mfma"): return
    if NODS and s.startswith("ds_read"): return
    if NOSM and (s.startswith("v_exp") or s.startswith("v_fma") or s.startswith("v_max3") or s.startswith("v_cvt_pk") or s.startswith("v_accvgpr")): return
    L.append("  " + s)
def E(s):
    RAW(s)
    sch.tick(cost(s))
def EA(items):
    for x in items: RAW(x)
    sch.tick(sum(cost(x) for x in items))
def LAB(s): L.append(s + ":")
def C(s): L.append("  ; " + s)

RING = 24576
EX = 98304
STM = 147456
STS = 148992
DUMP = 150528
LDS_TOTAL = 154624
PART = 43008

sJ, sB, sISB = 3, 5, 6
SRD_K, SRD_V, SRD_WQ, SRD_WO, SRD_X, SRD_WS = 8, 12, 16, 20, 24, 28
sW, sRB = 32, 33
sKO, sVO, sWQO, sWOO, sWOE = 34, 35, 36, 37, 38
sT0, sT1, sT2 = 39, 40, 41
sXC = 42
sOC = 43
sPASS = 44
sCEXP = 100
sU2 = 46
sXX = 4
sDT = 47
def srd(b): return f"s[{b}:{b+3}]"

vL, vC, vG, vFR = 0, 1, 2, 3
vVP, vVR, vWOR, vSTW, vSTR, vDYN = 4, 8, 12, 13, 14, 15
vKP, vKR, vWQP, vWQR, vWOP, vXP, vXR, vQW = 16, 20, 24, 28, 36, 40, 41, 42
vT = 43
vXP2 = 255
FA = [48, 80]
def vr(b, n=4): return f"v[{b}:{b+n-1}]"
def ar(b, n=4): return f"a[{b}:{b+n-1}]"

nstamp = [0]
FINE = opt.get("fine", "0") == "1"
FLO = int(opt.get("flo", "0"))
FN = int(opt.get("fn", "12"))
def fstamp():
    k = nstamp[0]; nstamp[0] += 1
    assert k < 15
    E(f"s_memrealtime s[{60+2*k}:{61+2*k}]")
def stamp(path_tag=None):
    if not STAMP: return
    if FINE and nstamp[0] > 0: return
    k = nstamp[0]; nstamp[0] += 1
    assert k < 15
    E(f"s_memrealtime s[{60+2*k}:{61+2*k}]")

def mfma(d, a, b, c):
    return f"v_mfma_f32_16x16x32_bf16 {d}, {a}, {b}, {c}"

def issue_items(kind, slot, parity=0):
    if kind is None: return []
    ft = parity >> 1; parity &= 1
    P, S, off, delta, nt = {
        "K": (vKP, SRD_K, sKO, 256, " nt"),
        "V": (vVP, SRD_V, sVO, 32768, " nt"),
        "WQ": (vWQP, SRD_WQ, sWQO, 131072, ""),
        "WO": (vWOP, SRD_WO, sWOO, 14336, ""),
    }[kind]
    if ft: nt = FTPOL
    items = []
    for u in range(2):
        for jj in range(4):
            it = []
            if jj == 0:
                it.append(f"s_add_u32 m0, s{sRB}, {slot*8192 + u*4096}")
                if u == 0: it.append(f"s_add_u32 s{sU2}, s{off}, {delta}")
                else: it.append("s_nop 0")
            so = off if u == 0 else sU2
            it.append(f"buffer_load_dwordx4 v{P+jj}, {srd(S)}, s{so} offen offset:{1024*jj}{nt} lds")
            if u == 1 and jj == 3:
                if kind == "K":
                    it.append(f"s_add_u32 s{off}, s{off}, 32768")
                elif kind == "V":
                    it.append(f"s_add_u32 s{off}, s{off}, {16384 if parity == 0 else 49152}")
                elif kind == "WQ":
                    it.append(f"s_add_u32 s{off}, s{off}, 262144")
                    it.append(f"s_cmp_eq_u32 s{off}, {14*262144}")
                    it.append(f"s_cselect_b32 s{off}, 0, s{off}")
                elif kind == "WO":
                    it.append(f"s_add_u32 s{off}, s{off}, 28672")
                    it.append(f"s_cmp_eq_u32 s{off}, s{sWOE}")
                    it.append(f"s_cselect_b32 s{sDT}, 229376, 0")
                    it.append(f"s_sub_u32 s{off}, s{off}, s{sDT}")
                    if parity == 1:
                        it.append(f"s_add_u32 s{off}, s{off}, 229376")
                        it.append(f"s_add_u32 s{sWOE}, s{sWOE}, 229376")
            items.append(it)
    return items

sch = Sched()

def spread(ms, items):
    n, m = len(ms), len(items)
    k = 0
    for i, mm in enumerate(ms):
        E(mm)
        tgt = ((i + 1) * m + n - 1) // n
        while k < min(tgt, m):
            EA(items[k]); k += 1
    while k < m:
        EA(items[k]); k += 1

class Ring:
    def __init__(self): self.n = 0
ring = Ring()

def do_read(items):
    for it in items: EA(it)

def phase(T, reads_fn, mfma_fn, cut, la=8, pre_read=None, between=None, pre=0, extra=None):
    base = ring.n - pre
    for n in range(T + 1):
        if between and n in between: between[n]()
        ms = mfma_fn(n - 1, (n - 1) & 1) if n >= 1 else []
        if n < T:
            g = base + n
            c = int(len(ms) * cut(n))
            for mm in ms[:c]: E(mm)
            ra, rb = reads_fn(n, g % 3, n & 1)
            if n >= pre:
                sch.wait_tile(g, la)
                if FINE and FLO <= g < FLO + FN: fstamp()
                if n == 0 and pre_read: pre_read()
                rd = rb[:1] + ra[:2] + rb[1:2] + ra[2:4] + rb[2:] + ra[4:]
                ring.n += 1
            else:
                rd = rb
            rest = ms[c:]
            tail = len(rest) // 6
            spread(rest[:len(rest)-tail], rd)
            for mm in rest[len(rest)-tail:]: E(mm)
            E("s_waitcnt lgkmcnt(0)")
            if n >= pre: sch.freed = g + 1
        else:
            for mm in ms: E(mm)

def early_read(reads_fn, n, la=8):
    g = ring.n
    sch.wait_tile(g, la)
    if FINE and FLO <= g < FLO + FN: fstamp()
    ra, rb = reads_fn(n, g % 3, n & 1)
    do_read(ra)
    ring.n += 1
    return g

def reads_K(dst_fn):
    def f(n, slot, st):
        return [[f"ds_read_b128 {dst_fn(n, st, 4*u+s)}, v{vKR+s} offset:{slot*8192+u*4096}"] for u in range(2) for s in range(4)], []
    return f

def reads_WQ(FB):
    def f(n, slot, st):
        first = [f"v_xor_b32 v{vDYN}, s{sXX}, v{vXR}", f"v_add_u32 v{vDYN}, s{sXC}, v{vDYN}",
                 f"s_mul_i32 s{sT1}, s{sXX}, 96", f"s_add_u32 s{sXC}, s{sXC}, s{sT1}", f"s_xor_b32 s{sXX}, s{sXX}, 64",
                 f"s_cmp_eq_u32 s{sXC}, {7*6144}", f"s_cselect_b32 s{sXC}, 0, s{sXC}"]
        rb = [first + [f"ds_read_b128 {vr(FB[st])}, v{vDYN} offset:0"]]
        for t in (1, 2): rb.append([f"ds_read_b128 {vr(FB[st]+4*t)}, v{vDYN} offset:{2048*t}"])
        ra = [[f"ds_read_b64_tr_b16 {vr(FA[st]+4*e+2*hf, 2)}, v{vWQR+e} offset:{slot*8192+hf*1024}"] for e in range(8) for hf in range(2)]
        return ra, rb
    return f

def reads_V(NQ, FB):
    def f(n, slot, st):
        nn = n if NQ == 3 else n % 4
        rb = [[f"ds_read_b128 {vr(FB[st]+4*(uu*NQ+t))}, v{vFR} offset:{((2*nn+uu)*NQ+t)*1024}"] for uu in range(2) for t in range(NQ)]
        ra = [[f"ds_read_b64_tr_b16 {vr(FA[st]+4*(uu*4+e)+2*hf, 2)}, v{vVR+e} offset:{slot*8192+hf*4096+uu*2048}"]
              for uu in range(2) for e in range(4) for hf in range(2)]
        return ra, rb
    return f

def reads_WO(FB, headfn):
    def f(n, slot, st):
        hb = headfn(n) * 24576
        rb = [[f"v_add_u32 v{vDYN}, s{sOC}, v{vFR}",
               f"s_add_u32 s{sOC}, s{sOC}, 3072", f"s_cmp_eq_u32 s{sOC}, {8*3072}", f"s_cselect_b32 s{sOC}, 0, s{sOC}",
               f"ds_read_b128 {vr(FB[st])}, v{vDYN} offset:{hb}"]]
        for t in (1, 2): rb.append([f"ds_read_b128 {vr(FB[st]+4*t)}, v{vDYN} offset:{hb+1024*t}"])
        ra = [[f"ds_read_b64_tr_b16 {vr(FA[st]+4*e+2*hf, 2)}, v{vWOR} offset:{slot*8192+hf*4096+e*32}"] for e in range(7) for hf in range(2)]
        return ra, rb
    return f

def setup_WOP():
    C("WO dma pattern: q=64jj+l ; row=q/14, cc=q%14 ; row*896 + w*224 + cc*16 - 1024jj ; q>=224 -> OOB")
    E(f"s_mul_i32 s{sT0}, s{sW}, 224")
    E(f"s_movk_i32 s{sT1}, 4682")
    E(f"s_mov_b32 s{sT2}, 0x40000000")
    for jj in range(4):
        q, row, t = vT, vT + 1, vT + 2
        E(f"v_add_u32 v{q}, {64*jj}, v{vL}")
        E(f"v_mul_u32_u24 v{row}, s{sT1}, v{q}")
        E(f"v_lshrrev_b32 v{row}, 16, v{row}")
        E(f"v_mul_u32_u24 v{t}, 14, v{row}")
        E(f"v_sub_u32 v{t}, v{q}, v{t}")
        E(f"v_lshlrev_b32 v{t}, 4, v{t}")
        E(f"v_mul_u32_u24 v{row}, 896, v{row}")
        E(f"v_add3_u32 v{vWOP+jj}, v{row}, v{t}, s{sT0}")
        if jj: E(f"v_subrev_u32 v{vWOP+jj}, {1024*jj}, v{vWOP+jj}")
    E(f"v_mov_b32 v{vT}, s{sT2}")
    E(f"v_cmp_gt_u32 vcc, 32, v{vL}")
    E("s_nop 1")
    E(f"v_cndmask_b32 v{vWOP+3}, v{vT}, v{vWOP+3}, vcc")

def setup():
    E("s_cmp_ge_u32 s2, 256")
    E("s_cbranch_scc1 L_end")
    stamp()
    if STAMP: E("s_memtime s[96:97]")
    E(f"s_and_b32 s{sJ}, s2, 7")
    E("s_lshr_b32 s4, s2, 3")
    E(f"s_and_b32 s{sB}, s4, 15")
    E(f"s_lshr_b32 s{sISB}, s4, 4")
    if JX:
        E(f"s_mul_i32 s7, s{sISB}, {JX}")
        E(f"s_xor_b32 s{sJ}, s{sJ}, s7")
    JM = int(opt.get("jm", "0"))
    if JM:
        E(f"s_and_b32 s7, s{sB}, {JM}")
        E(f"s_xor_b32 s{sJ}, s{sJ}, s7")
    E(f"s_xor_b32 s{sISB}, s{sISB}, 1")
    E(f"s_mul_i32 s7, s{sISB}, 40")
    E("s_load_dwordx2 s[58:59], s[0:1], 96")
    E("s_load_dwordx2 s[86:87], s[0:1], 40")
    E("s_load_dwordx2 s[88:89], s[0:1], 72")
    if FUSE:
        E("s_load_dwordx4 s[92:95], s[0:1], 80")
        E("s_memrealtime s[90:91]")
    E("s_add_u32 s0, s0, s7")
    E("s_addc_u32 s1, s1, 0")
    E("s_load_dwordx8 s[48:55], s[0:1], 0")
    E("s_load_dwordx2 s[56:57], s[0:1], 32")
    E(f"v_lshrrev_b32 v{vT}, 6, v0")
    E(f"v_and_b32 v{vL}, 63, v0")
    E(f"v_readfirstlane_b32 s{sW}, v{vT}")
    E(f"v_and_b32 v{vC}, 15, v{vL}")
    E(f"v_lshrrev_b32 v{vG}, 4, v{vL}")
    E(f"s_mul_i32 s{sRB}, s{sW}, {RING}")
    t0, t1, t2 = vT, vT + 1, vT + 2
    C("X dma pattern: row=l>>3, chunk=(l&7)^(2g): row*896+chunk*16")
    E(f"v_lshrrev_b32 v{t0}, 3, v{vL}")
    E(f"v_lshlrev_b32 v{t1}, 1, v{vG}")
    E(f"v_and_b32 v{t2}, 7, v{vL}")
    E(f"v_xor_b32 v{t1}, v{t1}, v{t2}")
    E(f"v_lshlrev_b32 v{t1}, 4, v{t1}")
    E(f"v_mul_u32_u24 v{t0}, 896, v{t0}")
    E(f"v_add_u32 v{vXP}, v{t0}, v{t1}")
    E(f"v_add_u32 v{vXP2}, 6144, v{vXP}")
    C("K dma pattern: row=4jj+g, chunk=c^row: row*512+chunk*16-1024jj")
    for jj in range(4):
        E(f"v_add_u32 v{t0}, {4*jj}, v{vG}")
        E(f"v_xor_b32 v{t1}, v{t0}, v{vC}")
        E(f"v_lshlrev_b32 v{t1}, 4, v{t1}")
        E(f"v_lshl_add_u32 v{vKP+jj}, v{t0}, 9, v{t1}")
        if jj: E(f"v_subrev_u32 v{vKP+jj}, {1024*jj}, v{vKP+jj}")
    C("WQ dma pattern: row=4jj+g, h=g|((jj>>1)<<2), chunk=c^(h<<1): row*8192+w*256+chunk*16-1024jj")
    E(f"s_lshl_b32 s{sT0}, s{sW}, 8")
    for jj in range(4):
        E(f"v_add_u32 v{t0}, {4*jj}, v{vG}")
        E(f"v_lshlrev_b32 v{t1}, 1, v{vG}")
        if jj >> 1: E(f"v_or_b32 v{t1}, 8, v{t1}")
        E(f"v_xor_b32 v{t1}, v{t1}, v{vC}")
        E(f"v_lshlrev_b32 v{t1}, 4, v{t1}")
        E(f"v_lshl_add_u32 v{t0}, v{t0}, 13, v{t1}")
        E(f"v_add_u32 v{vWQP+jj}, s{sT0}, v{t0}")
        if jj: E(f"v_subrev_u32 v{vWQP+jj}, {1024*jj}, v{vWQP+jj}")
    E("s_waitcnt lgkmcnt(0)")
    C("SRDs")
    E(f"s_lshl_b32 s{sT0}, s{sB}, 3")
    E(f"s_add_u32 s{sT0}, s{sT0}, s{sJ}")
    E(f"s_add_u32 s{sT1}, s{sISB}, 18")
    E(f"s_lshl_b32 s{sT2}, s{sT0}, s{sT1}")
    E(f"s_add_u32 s{SRD_K}, s50, s{sT2}")
    E(f"s_addc_u32 s{SRD_K+1}, s51, 0")
    E(f"s_lshl_b32 s{SRD_K+2}, 1, s{sT1}")
    E(f"s_mov_b32 s{SRD_K+3}, 0x20000")
    E(f"s_add_u32 s{SRD_V}, s52, s{sT2}")
    E(f"s_addc_u32 s{SRD_V+1}, s53, 0")
    E(f"s_lshl_b32 s{SRD_V+2}, 1, s{sT1}")
    E(f"s_mov_b32 s{SRD_V+3}, 0x20000")
    E(f"s_mul_i32 s{sT2}, s{sB}, {PART}")
    E(f"s_add_u32 s{SRD_X}, s48, s{sT2}")
    E(f"s_addc_u32 s{SRD_X+1}, s49, 0")
    E(f"s_mov_b32 s{SRD_X+2}, {PART}")
    E(f"s_mov_b32 s{SRD_X+3}, 0x20000")
    E(f"s_lshl_b32 s{sT2}, s{sJ}, 10")
    E(f"s_add_u32 s{SRD_WQ}, s54, s{sT2}")
    E(f"s_addc_u32 s{SRD_WQ+1}, s55, 0")
    E(f"s_sub_u32 s{SRD_WQ+2}, 3670016, s{sT2}")
    E(f"s_mov_b32 s{SRD_WQ+3}, 0x20000")
    E(f"s_mul_i32 s{sT2}, s{sJ}, 458752")
    E(f"s_add_u32 s{SRD_WO}, s56, s{sT2}")
    E(f"s_addc_u32 s{SRD_WO+1}, s57, 0")
    E(f"s_mov_b32 s{SRD_WO+2}, 458752")
    E(f"s_mov_b32 s{SRD_WO+3}, 0x20000")
    C("partial: index (isB*16+b)*8+j")
    E(f"s_lshl_b32 s{sT1}, s{sISB}, 7")
    E(f"s_add_u32 s{sT0}, s{sT0}, s{sT1}")
    E(f"s_mul_i32 s{sT2}, s{sT0}, {PART}")
    E(f"s_add_u32 s{SRD_WS}, s58, s{sT2}")
    E(f"s_addc_u32 s{SRD_WS+1}, s59, 0")
    E(f"s_mov_b32 s{SRD_WS+2}, {PART}")
    E(f"s_mov_b32 s{SRD_WS+3}, 0x20000")
    C("stream offsets")
    E(f"s_lshl_b32 s{sKO}, s{sW}, 13")
    E(f"s_mov_b32 s{sVO}, 0")
    E(f"s_cmp_ge_u32 s{sB}, 14")
    E(f"s_cselect_b32 s{sT0}, 14, 0")
    E(f"s_sub_u32 s{sT0}, s{sB}, s{sT0}")
    E(f"s_lshl_b32 s{sWQO}, s{sT0}, 18")
    E(f"s_and_b32 s{sXX}, s{sT0}, 1")
    E(f"s_lshl_b32 s{sXX}, s{sXX}, 6")
    E(f"s_lshr_b32 s{sT0}, s{sT0}, 1")
    E(f"s_mul_i32 s{sXC}, s{sT0}, 6144")
    E(f"s_and_b32 s{sT0}, s{sB}, 7")
    E(f"s_mul_i32 s{sWOO}, s{sT0}, 28672")
    E(f"s_mul_i32 s{sOC}, s{sT0}, 3072")
    E(f"s_mov_b32 s{sWOE}, 229376")
    E(f"s_mov_b32 s{sCEXP}, 0x3db8aa3b")
    E(f"s_mov_b32 s{sCEXP+1}, 0xbdb8aa3b")

def tag_issue(lab):
    if not FUSE: return
    RAW(f"s_cmp_eq_u32 s{sW}, 0")
    RAW(f"s_cbranch_scc0 L_notag{lab}")
    RAW("s_mov_b32 s52, s94")
    RAW("s_mov_b32 s53, s95")
    RAW("s_mov_b32 s54, 256")
    RAW("s_mov_b32 s55, 0x20000")
    RAW(f"s_lshl_b32 s{sT0}, s{sISB}, 4")
    RAW(f"s_add_u32 s{sT0}, s{sT0}, s{sB}")
    RAW(f"s_lshl_b32 s{sT0}, s{sT0}, 3")
    RAW("s_or_b32 s90, s90, 1")
    RAW("v_mov_b32 v248, s90")
    RAW("v_mov_b32 v249, s91")
    RAW("v_mov_b32 v250, 0")
    RAW("v_mov_b32 v251, 0")
    RAW("s_mov_b64 exec, 1")
    RAW(f"buffer_atomic_cmpswap_x2 v[248:251], v250, s[52:55], s{sT0} offen sc0 sc1")
    RAW("s_mov_b64 exec, -1")
    LAB(f"L_notag{lab}")

def get_tag():
    if not FUSE: return
    for x in ["v_readfirstlane_b32 s52, v248", "v_readfirstlane_b32 s53, v249", "s_nop 1",
        "s_cmp_eq_u32 s52, 0", "s_cselect_b32 s90, s90, s52", "s_cselect_b32 s91, s91, s53"]: RAW(x)

def lin_loads(S, n, soff, pol, dump):
    for i in range(n):
        if i % 4 == 0:
            if i: RAW(f"s_add_u32 s{soff}, s{soff}, 4096")
        RAW(f"buffer_load_dwordx4 v{vT+4}, {srd(S)}, s{soff} offen offset:{1024*(i%4)}{pol} lds")

def prefetch_x():
    assert sch.issued % 4 == 0
    C("L2 warm-up: x of the MHA branch for the same batch")
    RAW(f"v_lshlrev_b32 v{vT+4}, 4, v{vL}")
    RAW(f"s_mul_i32 s{sT2}, s{sB}, {PART}")
    RAW(f"s_add_u32 s48, s86, s{sT2}")
    RAW("s_addc_u32 s49, s87, 0")
    RAW(f"s_mov_b32 s50, {PART}")
    RAW("s_mov_b32 s51, 0x20000")
    RAW(f"s_mov_b32 m0, {DUMP}")
    RAW(f"s_mul_i32 s{sT0}, s{sW}, 11264")
    lin_loads(48, 11, sT0, "", None)

def prefetch_w():
    assert sch.issued % 4 == 0
    C("L2 warm-up: this CU's share of the weights used later on this XCD")
    RAW(f"v_lshlrev_b32 v{vT+4}, 4, v{vL}")
    RAW(f"s_mul_i32 s{sT2}, s{sJ}, 458752")
    RAW(f"s_add_u32 s52, s88, s{sT2}")
    RAW("s_addc_u32 s53, s89, 0")
    RAW("s_mov_b32 s54, 458752")
    RAW("s_mov_b32 s55, 0x20000")
    RAW(f"s_mov_b32 m0, {DUMP}")
    for pol in ([" nt", ""][:PFW] if PFW < 3 else [""]):
        for S in (52, SRD_WO):
            RAW(f"s_lshl_b32 s{sT0}, s{sB}, 2")
            RAW(f"s_add_u32 s{sT0}, s{sT0}, s{sW}")
            RAW(f"s_mul_i32 s{sT0}, s{sT0}, 7168")
            lin_loads(S, 7, sT0, pol, None)
        RAW(f"s_add_u32 s{sT0}, s{sWQO}, 131072")
        for u in range(2):
            for jj in range(4):
                RAW(f"buffer_load_dwordx4 v{vWQP+jj}, {srd(SRD_WQ)}, s{sWQO if u == 0 else sT0} offen offset:{1024*jj}{pol} lds")

def issue_X(tag):
    C("x -> EX : blocks [sp][rg], waves 0..2 load row groups 2w, 2w+1")
    assert sch.issued % 4 == 0
    sch.hold += 1
    E(f"s_cmp_eq_u32 s{sW}, 3")
    E(f"s_cbranch_scc1 L_nox{tag}")
    E(f"s_lshl_b32 s{sT1}, s{sW}, 11")
    E(f"s_mul_i32 s{sT0}, s{sW}, 14336")
    for sp in range(7):
        E(f"s_add_u32 m0, s{sT1}, {EX + 6144*sp}")
        E(f"s_add_u32 s{sT2}, s{sT0}, {128*sp}")
        E(f"buffer_load_dwordx4 v{vXP}, {srd(SRD_X)}, s{sT2} offen{XPOL} lds")
        E(f"buffer_load_dwordx4 v{vXP2}, {srd(SRD_X)}, s{sT2} offen offset:1024{XPOL} lds")
    LAB(f"L_nox{tag}")
    sch.hold -= 1

def setup2():
    t0, t1, t2 = vT, vT + 1, vT + 2
    r, cc = vT + 3, vT + 4
    E(f"v_lshlrev_b32 v{vFR}, 4, v{vL}")
    E(f"v_add_u32 v{vFR}, {EX}, v{vFR}")
    C("V dma pattern: row=8jj+(l>>3), chunk=(l&7)^(2g): row*512+w*128+chunk*16-1024jj")
    E(f"s_lshl_b32 s{sT0}, s{sW}, 7")
    E(f"v_lshrrev_b32 v{t0}, 3, v{vL}")
    E(f"v_and_b32 v{t1}, 7, v{vL}")
    E(f"v_lshlrev_b32 v{t2}, 1, v{vG}")
    E(f"v_xor_b32 v{t1}, v{t1}, v{t2}")
    E(f"v_lshlrev_b32 v{t1}, 4, v{t1}")
    E(f"v_lshl_add_u32 v{t0}, v{t0}, 9, v{t1}")
    E(f"v_add_u32 v{vVP}, s{sT0}, v{t0}")
    for jj in range(1, 4): E(f"v_add_u32 v{vVP+jj}, {3072*jj}, v{vVP}")
    E(f"v_lshrrev_b32 v{r}, 2, v{vC}")
    E(f"v_and_b32 v{cc}, 3, v{vC}")
    C("V read: (4g+r)*128 + (h<<5) + cc*8, h=((g&1)<<1)|(r>>1)")
    E(f"v_lshl_add_u32 v{t0}, v{vG}, 2, v{r}")
    E(f"v_lshrrev_b32 v{t1}, 1, v{t0}")
    E(f"v_and_b32 v{t1}, 3, v{t1}")
    E(f"v_lshlrev_b32 v{t1}, 5, v{t1}")
    E(f"v_lshl_add_u32 v{t1}, v{t0}, 7, v{t1}")
    E(f"v_lshl_add_u32 v{t1}, v{cc}, 3, v{t1}")
    E(f"v_add_u32 v{vVR}, s{sRB}, v{t1}")
    for e in range(1, 4): E(f"v_xor_b32 v{vVR+e}, {e<<5}, v{vVR}")
    C("WO read: (4g+r)*224 + cc*8")
    E(f"v_mul_u32_u24 v{t1}, 224, v{t0}")
    E(f"v_lshl_add_u32 v{t1}, v{cc}, 3, v{t1}")
    E(f"v_add_u32 v{vWOR}, s{sRB}, v{t1}")
    C("WQ read: (g>>1)*4096 + (8(g&1)+r)*256 + (h<<5) + cc*8, h=r|((g&1)<<2)")
    E(f"v_and_b32 v{t0}, 1, v{vG}")
    E(f"v_lshl_add_u32 v{t1}, v{t0}, 3, v{r}")
    E(f"v_lshlrev_b32 v{t1}, 8, v{t1}")
    E(f"v_lshl_add_u32 v{t2}, v{t0}, 2, v{r}")
    E(f"v_lshl_add_u32 v{t1}, v{t2}, 5, v{t1}")
    E(f"v_lshl_add_u32 v{t1}, v{cc}, 3, v{t1}")
    E(f"v_lshrrev_b32 v{t2}, 1, v{vG}")
    E(f"v_lshl_add_u32 v{t1}, v{t2}, 12, v{t1}")
    E(f"v_add_u32 v{vWQR}, s{sRB}, v{t1}")
    for e in range(1, 8): E(f"v_xor_b32 v{vWQR+e}, {e<<5}, v{vWQR}")
    C("K read: c*256 + ((g^c)<<4)")
    E(f"v_xor_b32 v{t1}, v{vG}, v{vC}")
    E(f"v_lshlrev_b32 v{t1}, 4, v{t1}")
    E(f"v_lshl_add_u32 v{t1}, v{vC}, 8, v{t1}")
    E(f"v_add_u32 v{vKR}, s{sRB}, v{t1}")
    for s in range(1, 4): E(f"v_xor_b32 v{vKR+s}, {s<<6}, v{vKR}")
    C("x read: EX + (c>>3)*1024 + (c&7)*128 + ((g^(((c>>1)&3)<<1))<<4)")
    E(f"v_and_b32 v{t1}, 6, v{vC}")
    E(f"v_xor_b32 v{t1}, v{t1}, v{vG}")
    E(f"v_lshlrev_b32 v{t1}, 4, v{t1}")
    E(f"v_lshl_add_u32 v{t1}, v{vC}, 7, v{t1}")
    E(f"v_add_u32 v{vXR}, {EX}, v{t1}")
    C("Q write: EX + w*12288 + 256(g>>1) + 16c + 8(g&1)")
    E(f"s_mul_i32 s{sT0}, s{sW}, 12288")
    E(f"s_add_u32 s{sT0}, s{sT0}, {EX}")
    E(f"v_lshlrev_b32 v{t1}, 8, v{t2}")
    E(f"v_lshl_add_u32 v{t1}, v{vC}, 4, v{t1}")
    E(f"v_lshl_add_u32 v{t1}, v{t0}, 3, v{t1}")
    E(f"v_add_u32 v{vQW}, s{sT0}, v{t1}")
    C("stats")
    E(f"v_lshlrev_b32 v{t1}, 4, v{vC}")
    E(f"v_add_u32 v{vSTR}, {STM}, v{t1}")
    E(f"s_lshl_b32 s{sT0}, s{sW}, 2")
    E(f"v_add_u32 v{vSTW}, s{sT0}, v{vSTR}")

WCUT = float(opt.get("wcut", "0.05"))
LA = int(opt.get("la", "8"))
LE = int(opt.get("le", "24"))
QACC = 160
def qproj(tag=False):
    FB = [112, 136]
    def mf(n, st):
        out = []
        for e in range(8):
            for t in range(3):
                d = vr(QACC + (e*3+t)*4)
                out.append(mfma(d, vr(FA[st]+4*e), vr(FB[st]+4*t), "0" if n == 0 else d))
        return out
    phase(14, reads_WQ(FB), mf, lambda n: WCUT, la="W", pre_read=lambda: (get_tag() if tag else None, E("s_barrier")))
    E("s_nop 7")
    for e in range(8):
        for t in range(3):
            b = QACC + (e*3+t)*4
            E(f"v_cvt_pk_bf16_f32 v{b}, v{b}, v{b+1}")
            E(f"v_cvt_pk_bf16_f32 v{b+1}, v{b+2}, v{b+3}")
    E("s_barrier")
    for e in range(8):
        for t in range(3):
            b = QACC + (e*3+t)*4
            E(f"ds_write_b64 v{vQW}, {vr(b,2)} offset:{((e>>1)*3+t)*1024+(e&1)*512}")
    E("s_waitcnt lgkmcnt(0)")
    E("s_barrier")

def xlane(op, regs, tmps):
    for sw in ("v_permlane32_swap_b32", "v_permlane16_swap_b32"):
        for r, t in zip(regs, tmps): E(f"v_mov_b32 v{t}, v{r}")
        E("s_nop 1")
        for r, t in zip(regs, tmps): E(f"{sw} v{t}, v{r}")
        E("s_nop 1")
        for r, t in zip(regs, tmps): E(f"{op} v{r}, v{r}, v{t}")

SMST = opt.get("smst", "0") == "1"
def softmax(NQ, SB, TB, hooks=None):
    S = lambda kt, t, r: SB + (kt*NQ+t)*4 + r
    M = [TB + 2*t for t in range(NQ)]
    T1 = [TB + 2*t + 1 for t in range(NQ)]
    SUM = [TB + 2*NQ + 2*t for t in range(NQ)]
    R4 = TB + 4*NQ
    R4 += (-R4) % 4
    E("s_nop 7")
    vals = [[S(kt, t, r) for kt in range(8) for r in range(4)] for t in range(NQ)]
    for t in range(NQ): E(f"v_max3_f32 v{M[t]}, v{vals[t][0]}, v{vals[t][1]}, v{vals[t][2]}")
    for i in range(3, 31, 2):
        for t in range(NQ): E(f"v_max3_f32 v{M[t]}, v{M[t]}, v{vals[t][i]}, v{vals[t][i+1]}")
    for t in range(NQ): E(f"v_max_f32 v{M[t]}, v{M[t]}, v{vals[t][31]}")
    xlane("v_max_f32", M, T1)
    for t in range(NQ): E(f"ds_write_b32 v{vSTW}, v{M[t]} offset:{t*256}")
    E("s_waitcnt lgkmcnt(0)")
    if SMST: fstamp()
    E("s_barrier")
    if SMST: fstamp()
    for t in range(NQ): E(f"ds_read_b128 {vr(R4+4*t)}, v{vSTR} offset:{t*256}")
    E("s_waitcnt lgkmcnt(0)")
    for t in range(NQ): E(f"v_max3_f32 v{M[t]}, v{R4+4*t}, v{R4+4*t+1}, v{R4+4*t+2}")
    for t in range(NQ): E(f"v_max_f32 v{M[t]}, v{M[t]}, v{R4+4*t+3}")
    for t in range(NQ): E(f"v_mul_f32 v{M[t]}, s{sCEXP+1}, v{M[t]}")
    def fma(i):
        for t in range(NQ):
            a = vals[t][2*i]
            E(f"v_pk_fma_f32 {vr(a,2)}, {vr(a,2)}, s[{sCEXP}:{sCEXP+1}], {vr(M[t],2)} op_sel_hi:[1,0,0]")
    fma(0)
    for i in range(16):
        if hooks and i in hooks: hooks[i]()
        if i < 15: fma(i + 1)
        for t in range(NQ):
            E(f"v_exp_f32 v{vals[t][2*i]}, v{vals[t][2*i]}")
            E(f"v_exp_f32 v{vals[t][2*i+1]}, v{vals[t][2*i+1]}")
        if i >= 2:
            for t in range(NQ):
                if i == 2: E(f"v_pk_add_f32 {vr(SUM[t],2)}, {vr(vals[t][0],2)}, {vr(vals[t][2],2)}")
                else: E(f"v_pk_add_f32 {vr(SUM[t],2)}, {vr(SUM[t],2)}, {vr(vals[t][2*i-2],2)}")
    E("s_nop 0")
    for t in range(NQ): E(f"v_pk_add_f32 {vr(SUM[t],2)}, {vr(SUM[t],2)}, {vr(vals[t][30],2)}")
    for t in range(NQ): E(f"v_add_f32 v{SUM[t]}, v{SUM[t]}, v{SUM[t]+1}")
    xlane("v_add_f32", SUM, T1)
    for t in range(NQ): E(f"ds_write_b32 v{vSTW}, v{SUM[t]} offset:{STS-STM+t*256}")
    if SMST: fstamp()

def pack_pair(NQ, SB, u, t, dst):
    a = SB + ((2*u)*NQ+t)*4; b = SB + ((2*u+1)*NQ+t)*4
    E(f"v_cvt_pk_bf16_f32 v{dst+3}, v{b+2}, v{b+3}")
    E(f"v_cvt_pk_bf16_f32 v{dst+2}, v{b}, v{b+1}")
    E(f"v_cvt_pk_bf16_f32 v{dst}, v{a}, v{a+1}")
    E(f"v_cvt_pk_bf16_f32 v{dst+1}, v{a+2}, v{a+3}")

def o_final(NQ, OACC, TB):
    R4 = TB
    RL = [TB + 4*NQ + t for t in range(NQ)]
    W = TB + 5*NQ; W += (-W) % 4
    for t in range(NQ): E(f"ds_read_b128 {vr(R4+4*t)}, v{vSTR} offset:{STS-STM+t*256}")
    E(f"s_mul_i32 s{sT0}, s{sW}, 6144")
    E(f"v_add_u32 v{vDYN}, s{sT0}, v{vFR}")
    E("s_waitcnt lgkmcnt(0)")
    for t in range(NQ): E(f"v_add_f32 v{RL[t]}, v{R4+4*t}, v{R4+4*t+1}")
    for t in range(NQ): E(f"v_add_f32 v{R4+4*t+2}, v{R4+4*t+2}, v{R4+4*t+3}")
    for t in range(NQ): E(f"v_add_f32 v{RL[t]}, v{RL[t]}, v{R4+4*t+2}")
    for t in range(NQ): E(f"v_rcp_f32 v{RL[t]}, v{RL[t]}")
    E("s_nop 4")
    outs = []
    k = 0
    for ep in range(2):
        for t in range(NQ):
            base = W + 8*k; k += 1
            for h in range(2):
                for r in range(4):
                    E(f"v_accvgpr_read_b32 v{base+4*h+r}, a{OACC+((2*ep+h)*NQ+t)*4+r}")
            for i in range(8): E(f"v_mul_f32 v{base+i}, v{base+i}, v{RL[t]}")
            for i in range(4): E(f"v_cvt_pk_bf16_f32 v{base+i}, v{base+2*i}, v{base+2*i+1}")
            outs.append((base, ((t//3)*24 + ep*3 + (t % 3))*1024))
    E("s_barrier")
    for base, off in outs: E(f"ds_write_b128 v{vDYN}, {vr(base)} offset:{off}")
    E("s_waitcnt lgkmcnt(0)")
    E("s_barrier")

OUT = 96
def oproj(T, headfn):
    FB = [112, 136]
    def mf(n, st):
        out = []
        for e in range(7):
            for t in range(3):
                d = ar(OUT + (e*3+t)*4)
                out.append(mfma(d, vr(FA[st]+4*e), vr(FB[st]+4*t), d))
        return out
    phase(T, reads_WO(FB, headfn), mf, lambda n: WCUT, la="W")

def zero_out():
    for i in range(84): E(f"v_accvgpr_write_b32 a{OUT+i}, 0")

def store_partial():
    E("s_nop 7")
    pol = (" " + STPOL.replace("+", " ")) if STPOL else ""
    E(f"s_mul_i32 s{sT0}, s{sW}, 10752")
    E(f"v_lshlrev_b32 v{vT}, 4, v{vL}")
    E(f"v_lshlrev_b32 v{vT+1}, 3, v{vL}")
    k = 0
    B0 = 48
    for m in range(3):
        for t in range(3):
            base = B0 + 8*k
            for h in range(2):
                for r in range(4):
                    E(f"v_accvgpr_read_b32 v{base+4*h+r}, a{OUT+((2*m+h)*3+t)*4+r}")
            for i in range(4): E(f"v_cvt_pk_bf16_f32 v{base+i}, v{base+2*i}, v{base+2*i+1}")
            if k % 4 == 0 and k: E(f"s_add_u32 s{sT0}, s{sT0}, 4096")
            E(f"buffer_store_dwordx4 {vr(base)}, v{vT}, {srd(SRD_WS)}, s{sT0} offen offset:{(k%4)*1024}{pol}")
            k += 1
    for t in range(3):
        base = B0 + 8*k; k += 1
        for r in range(4): E(f"v_accvgpr_read_b32 v{base+r}, a{OUT+(18+t)*4+r}")
        for i in range(2): E(f"v_cvt_pk_bf16_f32 v{base+i}, v{base+2*i}, v{base+2*i+1}")
        E(f"buffer_store_dwordx2 {vr(base,2)}, v{vT+1}, {srd(SRD_WS)}, s{sT0} offen offset:{1024+512*t}{pol}")

def write_stamps():
    if not STAMP: return
    E("s_waitcnt vmcnt(0)")
    stamp()
    E("s_memtime s[98:99]")
    E("s_waitcnt lgkmcnt(0)")
    n = nstamp[0]
    E("s_mov_b32 s48, s58")
    E("s_mov_b32 s49, s59")
    E("s_add_u32 s48, s48, 0x4000000")
    E("s_addc_u32 s49, s49, 0")
    E("s_mov_b32 s50, 0x100000")
    E("s_mov_b32 s51, 0x20000")
    E(f"s_lshl_b32 s{sT0}, s2, 2")
    E(f"s_add_u32 s{sT0}, s{sT0}, s{sW}")
    E(f"s_lshl_b32 s{sT0}, s{sT0}, 7")
    E(f"v_mov_b32 v{vT}, 0")
    E(f"v_cmp_eq_u32 vcc, 0, v{vL}")
    E("s_and_saveexec_b64 s[52:53], vcc")
    for k in range(1, n):
        E(f"s_sub_u32 s{sT1}, s{60+2*k}, s60")
        E(f"v_mov_b32 v{vT+1}, s{sT1}")
        E(f"buffer_store_dword v{vT+1}, v{vT}, s[48:51], s{sT0} offen offset:{4*k}")
        E("s_nop 1")
    E(f"v_mov_b32 v{vT+1}, s60")
    E(f"buffer_store_dword v{vT+1}, v{vT}, s[48:51], s{sT0} offen offset:0")
    E("s_sub_u32 s98, s98, s96")
    E(f"v_mov_b32 v{vT+2}, s98")
    E(f"buffer_store_dword v{vT+2}, v{vT}, s[48:51], s{sT0} offen offset:124")

def red_loads(nd, base, voff, soff):
    for jj in range(8):
        RAW(f"buffer_load_dwordx{nd} {vr(base+4*jj, nd)}, v{voff}, {srd(SRD_K)}, s{soff} offen{LDPOL}")
        if jj < 7: RAW(f"s_add_u32 s{soff}, s{soff}, {PART}")

def red_finish(nd, base, after, voff, soff):
    ACC = 200; T = 196
    for jj in range(8):
        RAW(f"s_waitcnt vmcnt({7-jj+after})")
        for i in range(nd):
            r = base + 4*jj + i
            if jj == 0:
                RAW(f"v_lshlrev_b32 v{ACC+2*i}, 16, v{r}")
                RAW(f"v_and_b32 v{ACC+2*i+1}, s{sT2}, v{r}")
            else:
                RAW(f"v_lshlrev_b32 v{T}, 16, v{r}")
                RAW(f"v_and_b32 v{T+1}, s{sT2}, v{r}")
                RAW(f"v_pk_add_f32 {vr(ACC+2*i,2)}, {vr(ACC+2*i,2)}, {vr(T,2)}")
    for i in range(nd): RAW(f"v_cvt_pk_bf16_f32 v{base+i}, v{ACC+2*i}, v{ACC+2*i+1}")
    RAW("s_nop 1")
    if nd == 4:
        RAW(f"v_permlane16_swap_b32 v{base}, v{base+2}")
        RAW(f"v_permlane16_swap_b32 v{base+1}, v{base+3}")
        RAW("s_nop 1")
    RAW(f"buffer_store_dwordx{nd} {vr(base, nd)}, v{voff}, {srd(SRD_V)}, s{soff} offen{OUTPOL}")

def pair_params(sp, ssrc, sout):
    RAW(f"s_mul_i32 s52, s{sp}, 57")
    RAW("s_lshr_b32 s52, s52, 9")
    RAW("s_mul_i32 s53, s52, 9")
    RAW(f"s_sub_u32 s53, s{sp}, s53")
    RAW(f"s_mul_i32 s{ssrc}, s52, 10752")
    RAW("s_lshl_b32 s54, s53, 10")
    RAW(f"s_add_u32 s{ssrc}, s{ssrc}, s54")
    RAW("s_mul_i32 s54, s53, 86")
    RAW("s_lshr_b32 s54, s54, 8")
    RAW("s_mul_i32 s55, s54, 3")
    RAW("s_sub_u32 s55, s53, s55")
    RAW(f"s_mul_i32 s{sout}, s52, 224")
    RAW("s_lshl_b32 s54, s54, 6")
    RAW(f"s_add_u32 s{sout}, s{sout}, s54")
    RAW("s_mul_i32 s55, s55, 28672")
    RAW(f"s_add_u32 s{sout}, s{sout}, s55")
    RAW(f"s_add_u32 s{sout}, s{sout}, s57")

def fused_tail():
    LAB("L_tail")
    store_partial()
    C("group = isB*16+b ; SRD_K <- 8 partials of the group, SRD_V <- out, SRD_WQ <- debug counters")
    RAW(f"s_lshl_b32 s56, s{sISB}, 4")
    RAW(f"s_add_u32 s56, s56, s{sB}")
    RAW(f"s_mul_i32 s{sT0}, s56, {8*PART}")
    RAW(f"s_add_u32 s{SRD_K}, s58, s{sT0}")
    RAW(f"s_addc_u32 s{SRD_K+1}, s59, 0")
    RAW(f"s_mov_b32 s{SRD_K+2}, {8*PART}")
    RAW(f"s_mov_b32 s{SRD_K+3}, 0x20000")
    RAW(f"s_mov_b32 s{SRD_V}, s92")
    RAW(f"s_mov_b32 s{SRD_V+1}, s93")
    RAW(f"s_mov_b32 s{SRD_V+2}, {16*48*896*2}")
    RAW(f"s_mov_b32 s{SRD_V+3}, 0x20000")
    RAW("s_lshl_b32 s56, s56, 12")
    RAW("s_add_u32 s56, s56, 0x1000000")
    RAW(f"s_add_u32 s{SRD_WQ}, s58, s56")
    RAW(f"s_addc_u32 s{SRD_WQ+1}, s59, 0")
    RAW(f"s_mov_b32 s{SRD_WQ+2}, 64")
    RAW(f"s_mov_b32 s{SRD_WQ+3}, 0x20000")
    RAW(f"s_lshl_b32 s56, s{sJ}, 3")
    RAW(f"s_mul_i32 s57, s{sB}, 86016")
    RAW(f"s_mul_i32 s{sT0}, s{sISB}, 896")
    RAW(f"s_add_u32 s57, s57, s{sT0}")
    RAW(f"s_lshl_b32 s48, s{sJ}, 2")
    RAW(f"s_add_u32 s48, s48, s{sW}")
    pair_params(48, 49, 50)
    RAW(f"s_mov_b32 s{sT2}, 0xffff0000")
    RAW(f"v_mul_u32_u24 v190, 1792, v{vC}")
    RAW(f"v_lshl_add_u32 v191, v{vG}, 3, v190")
    RAW(f"v_and_b32 v192, 1, v{vG}")
    RAW("v_lshl_add_u32 v190, v192, 5, v190")
    RAW(f"v_lshrrev_b32 v192, 1, v{vG}")
    RAW("v_lshl_add_u32 v190, v192, 4, v190")
    RAW("v_mov_b32 v194, s90")
    RAW("v_mov_b32 v195, s91")
    RAW("s_waitcnt vmcnt(0)")
    stamp()
    RAW("s_barrier")
    RAW(f"s_cmp_eq_u32 s{sW}, 0")
    RAW("s_cbranch_scc0 L_go")
    RAW("s_mov_b64 exec, 1")
    RAW(f"buffer_store_dwordx2 v[194:195], v{vT+1}, {srd(SRD_WQ)}, s56 offen sc1")
    RAW("s_mov_b64 exec, 0xff")
    RAW("s_mov_b32 s51, 0")
    LAB("L_poll")
    RAW(f"buffer_load_dwordx2 v[198:199], v{vT+1}, {srd(SRD_WQ)}, 0 offen sc1")
    RAW("s_add_u32 s51, s51, 1")
    RAW("s_waitcnt vmcnt(0)")
    RAW("v_cmp_eq_u64 vcc, v[198:199], v[194:195]")
    RAW("s_nop 1")
    RAW("s_cmp_eq_u32 vcc_lo, 0xff")
    RAW("s_cbranch_scc1 L_polled")
    RAW("s_cmp_ge_u32 s51, 0x100000")
    RAW("s_cbranch_scc1 L_polled")
    RAW(f"s_sleep {opt.get('slp', '4')}")
    RAW("s_branch L_poll")
    LAB("L_polled")
    RAW("s_mov_b64 exec, -1")
    LAB("L_go")
    RAW("s_barrier")
    stamp()
    red_loads(4, 48, vT, 49)
    RAW("s_cmp_lt_u32 s48, 4")
    RAW("s_cbranch_scc1 L_r2pair")
    RAW("s_cmp_lt_u32 s48, 16")
    RAW("s_cbranch_scc1 L_r2single")
    red_finish(4, 48, 0, 190, 50)
    RAW("s_branch L_fin")
    LAB("L_r2pair")
    RAW("s_add_u32 s48, s48, 32")
    pair_params(48, 49, 51)
    red_loads(4, 80, vT, 49)
    red_finish(4, 48, 8, 190, 50)
    red_finish(4, 80, 1, 190, 51)
    RAW("s_branch L_fin")
    LAB("L_r2single")
    RAW("s_sub_u32 s48, s48, 4")
    RAW("s_mul_i32 s52, s48, 86")
    RAW("s_lshr_b32 s52, s52, 8")
    RAW("s_mul_i32 s53, s52, 3")
    RAW("s_sub_u32 s53, s48, s53")
    RAW("s_mul_i32 s49, s52, 10752")
    RAW("s_lshl_b32 s54, s53, 9")
    RAW("s_add_u32 s49, s49, s54")
    RAW("s_add_u32 s49, s49, 9216")
    RAW("s_mul_i32 s51, s52, 224")
    RAW("s_mul_i32 s53, s53, 28672")
    RAW("s_add_u32 s51, s51, s53")
    RAW("s_add_u32 s51, s51, 192")
    RAW("s_add_u32 s51, s51, s57")
    red_loads(2, 80, vT+1, 49)
    red_finish(4, 48, 8, 190, 50)
    red_finish(2, 80, 1, 191, 51)
    LAB("L_fin")
    write_stamps()
    RAW("s_endpgm")

def finish(nst):
    if FUSE:
        E("s_branch L_tail")
    else:
        store_partial()
        write_stamps()
        E("s_endpgm")

def Ktiles(n): return [("K", i & 1) for i in range(n)]
def WOtiles(): return [("WO", (2 if i < NFO else 0) | (1 if i == 7 else 0)) for i in range(8)]
def WQtiles(nf): return [("WQ", 2 if i < nf else 0) for i in range(14)]

def path_B():
    NQ = 3; SB = 160; FB = [112, 136]; QA, QB, OACC = 0, 96, 192
    ring.n = 0
    sch.reset(WQtiles(NFQ) + Ktiles(8) + [("V", i & 1) for i in range(8)] + WOtiles() + Ktiles(LE // 8))
    sch.space["K"] = sch.space["V"] = int(opt.get("bsp", "110"))
    sch.space["WQ"] = sch.space["WO"] = int(opt.get("wsp", "44"))
    if FINE: fstamp()
    if opt.get("xfirst", "0" if PFX else "1") == "1":
        issue_X("B"); sch.force(16)
    else:
        sch.force(8); issue_X("B"); sch.force(16)
    if FINE: fstamp()
    sch.limit = 8 * 14 + LE
    setup2(); setup_WOP()
    if opt.get("xfirst", "0" if PFX else "1") != "1":
        RAW(f"s_waitcnt vmcnt({sch.issued - 8})")
    qproj()
    stamp()
    for h in range(2):
        for s in range(8):
            for t in range(3):
                E(f"ds_read_b128 {ar((QA if h == 0 else QB)+(s*3+t)*4)}, v{vFR} offset:{((h*8+s)*3+t)*1024}")
            if s % 4 == 3: E("s_waitcnt lgkmcnt(0)")
    E(f"s_mov_b32 s{sPASS}, 0")
    sch.force(8 * 14 + LE)
    sch.limit = 10**9
    sch.clock = 0
    LAB("L_Bpass")
    save = nstamp[0]
    def mfS(n, st):
        out = []
        for s in range(8):
            for t in range(3):
                d = vr(SB + (n*3+t)*4)
                out.append(mfma(d, vr(FA[st]+4*s), ar(QA+(s*3+t)*4), "0" if s == 0 else d))
        return out
    phase(8, reads_K(lambda n, st, i: vr(FA[st]+4*i)), mfS, lambda n: 1.0, la=LA)
    stamp()
    rv = reads_V(NQ, FB)
    pend = []
    def h0(): pend.append(early_read(rv, len(pend), la=0))
    def h0b():
        E("s_waitcnt lgkmcnt(0)"); sch.freed = pend[-1] + 1
    H0 = int(opt.get("h0", "5")); H1 = int(opt.get("h1", "13"))
    hk = {H0: h0, H0 + 1: h0b}
    if H1 < 15: hk.update({H1: h0, H1 + 1: h0b})
    if SMST: fstamp()
    softmax(NQ, SB, 112, hooks=hk)
    E(f"s_mul_i32 s{sT0}, s{sW}, {NQ*1024}")
    E(f"v_add_u32 v{vDYN}, s{sT0}, v{vFR}")
    for u in range(4):
        for t in range(NQ):
            dst = SB + ((2*u+1)*NQ+t)*4
            pack_pair(NQ, SB, u, t, dst)
            E(f"ds_write_b128 v{vDYN}, {vr(dst)} offset:{(4*u*NQ+t)*1024}")
    if H1 >= 15: h0()
    h0b()
    if SMST: fstamp()
    E("s_barrier")
    if SMST: fstamp()
    stamp()
    def mfV(n, st):
        out = []
        for uu in range(2):
            for e in range(4):
                for t in range(NQ):
                    d = ar(OACC + (e*NQ+t)*4)
                    out.append(mfma(d, vr(FA[st]+4*(uu*4+e)), vr(FB[st]+4*(uu*NQ+t)), "0" if (n == 0 and uu == 0) else d))
        return out
    def copyq():
        sch.hold += 1
        E(f"s_cmp_eq_u32 s{sPASS}, 0")
        E("s_cbranch_scc0 L_Bnocopy")
        tag_issue("B")
        for i in range(96): RAW(f"v_accvgpr_mov_b32 a{QA+i}, a{QB+i}")
        for i in range(84): RAW(f"v_accvgpr_write_b32 a{OUT+i}, 0")
        LAB("L_Bnocopy")
        sch.hold -= 1
    phase(8, rv, mfV, lambda n: 0.0 if n <= 1 else (0.3 if n == 2 else 1.0), la=LA, pre=2, between={5: copyq})
    stamp()
    if FUSE:
        RAW(f"s_cmp_eq_u32 s{sPASS}, 0")
        RAW("s_cbranch_scc0 L_Bnoget")
        get_tag()
        LAB("L_Bnoget")
    o_final(NQ, OACC, 160)
    stamp()
    oproj(8, lambda n: 0)
    stamp()
    assert ring.n == 38
    sch.force(8 * 38 + LE)
    if STAMP and not FINE:
        E(f"s_cmp_eq_u32 s{sPASS}, 0")
        E("s_cbranch_scc0 L_Bnost")
        E("s_waitcnt lgkmcnt(0)")
        cnt = nstamp[0] - save
        for k in range(cnt):
            E(f"s_mov_b32 s{60+2*(nstamp[0]+k)}, s{60+2*(save+k)}")
        nstamp[0] += cnt
        LAB("L_Bnost")
    E(f"s_add_u32 s{sPASS}, s{sPASS}, 1")
    E(f"s_cmp_lt_u32 s{sPASS}, 2")
    E("s_cbranch_scc1 L_Bpass")
    finish(0)

def path_A():
    NQ = 6; SB = 64; OACC = 0
    ring.n = 0
    nstamp[0] = 1
    sch.reset(Ktiles(8) + WQtiles(0 if PFW else NFQ) + [("V", i & 1) for i in range(8)] + WOtiles() + WOtiles())
    sch.space["K"] = 170
    sch.space["V"] = int(opt.get("asp", "400"))
    sch.space["WQ"] = sch.space["WO"] = int(opt.get("wsp", "44"))
    if FINE: fstamp()
    if PFX: prefetch_x()
    if PFW and PFPOS == 0: prefetch_w()
    sch.force(16)
    if PFW and PFPOS == 1: prefetch_w()
    if FINE: fstamp()
    sch.limit = 64
    setup2()
    def xnow():
        sch.force(64); issue_X("A"); sch.limit = 10**9
    phase(8, reads_K(lambda n, st, i: ar((n*8+i)*4)), lambda n, st: [], lambda n: 1.0, la=LA, between={6: xnow})
    stamp()
    if ASTOP == 1: RAW('s_endpgm')
    qproj()
    stamp()
    if ASTOP == 2: RAW('s_endpgm')
    sch.limit = 8 * 30
    QF = [16, 40]
    def rdQ(s, st):
        return [[f"ds_read_b128 {vr(QF[st]+4*tt)}, v{vFR} offset:{(((tt//3)*8+s)*3+(tt%3))*1024}"] for tt in range(6)]
    do_read(rdQ(0, 0))
    E("s_waitcnt lgkmcnt(0)")
    for s in range(8):
        ms = []
        for kt in range(8):
            for tt in range(6):
                d = vr(SB + (kt*6+tt)*4)
                ms.append(mfma(d, ar((kt*8+s)*4), vr(QF[s & 1]+4*tt), "0" if s == 0 else d))
        spread(ms[:32], rdQ(s+1, (s+1) & 1) if s < 7 else [])
        for mm in ms[32:]: E(mm)
        RAW("s_waitcnt lgkmcnt(0)")
    stamp()
    if ASTOP == 3: RAW('s_endpgm')
    softmax(NQ, SB, 16)
    E(f"s_mul_i32 s{sT0}, s{sW}, {NQ*1024}")
    E(f"v_add_u32 v{vDYN}, s{sT0}, v{vFR}")
    for u in range(2):
        for t in range(NQ):
            dst = SB + ((2*u+1)*NQ+t)*4
            pack_pair(NQ, SB, u, t, dst)
            E(f"ds_write_b128 v{vDYN}, {vr(dst)} offset:{(4*u*NQ+t)*1024}")
    for t in range(NQ): pack_pair(NQ, SB, 3, t, 232 + 4*t)
    for t in range(NQ): pack_pair(NQ, SB, 2, t, 208 + 4*t)
    zero_out()
    setup_WOP()
    sch.limit = 10**9
    E("s_waitcnt lgkmcnt(0)")
    E("s_barrier")
    stamp()
    if ASTOP == 4: RAW('s_endpgm')
    FB = [112, 160]
    def mfV(n, st):
        out = []
        for uu in range(2):
            for e in range(4):
                for t in range(NQ):
                    d = ar(OACC + (e*NQ+t)*4)
                    out.append(mfma(d, vr(FA[st]+4*(uu*4+e)), vr(FB[st]+4*(uu*NQ+t)), "0" if (n == 0 and uu == 0) else d))
        return out
    def half2():
        E("s_barrier")
        for u in range(2):
            for t in range(NQ):
                E(f"ds_write_b128 v{vDYN}, {vr(208+24*u+4*t)} offset:{(4*u*NQ+t)*1024}")
        E("s_waitcnt lgkmcnt(0)")
        tag_issue("A")
        E("s_barrier")
    if opt.get("ath", "2") != "n": sch.throttle = int(opt.get("ath", "2"))
    phase(8, reads_V(NQ, FB), mfV, lambda n: 0.1 if n <= 2 else 0.6, la=int(opt.get("ala", "2")), between={4: half2})
    stamp()
    if ASTOP == 5: RAW('s_endpgm')
    get_tag()
    o_final(NQ, OACC, 112)
    stamp()
    if ASTOP == 6: RAW('s_endpgm')
    oproj(16, lambda n: n // 8)
    stamp()
    if ASTOP == 7: RAW('s_endpgm')
    sch.reset([])
    if FUSE:
        nstamp[0] = 15 if FINE else 12
        fused_tail()
    else:
        finish(0)

def kd(name, vg, acc, sg):
    L.append(f""".section .rodata,"a"
.p2align 6
.amdhsa_kernel {name}
  .amdhsa_next_free_vgpr {vg}
  .amdhsa_next_free_sgpr {sg}
  .amdhsa_accum_offset {acc}
  .amdhsa_group_segment_fixed_size 0
  .amdhsa_kernarg_size 104
  .amdhsa_user_sgpr_count 2
  .amdhsa_user_sgpr_kernarg_segment_ptr 1
  .amdhsa_system_sgpr_workgroup_id_x 1
.end_amdhsa_kernel""")

def reduce_kernel():
    L.append(f".text\n.globl {K2}\n.p2align 8\n.type {K2},@function\n{K2}:")
    C("wg = bb*12 + item ; wave = producer wave w ; item<9: pair slot (m=item/3,t=item%3) else single (t=item-9)")
    E("s_cmp_ge_u32 s2, 384")
    E("s_cbranch_scc1 L_rend")
    if STAMP: E("s_memrealtime s[32:33]")
    E("s_load_dwordx2 s[4:5], s[0:1], 80")
    E("s_load_dwordx2 s[6:7], s[0:1], 96")
    E("s_mul_i32 s8, s2, 5462")
    E("s_lshr_b32 s8, s8, 16")
    E("s_mul_i32 s9, s8, 12")
    E("s_sub_u32 s9, s2, s9")
    E("v_lshrrev_b32 v1, 6, v0")
    E("v_and_b32 v0, 63, v0")
    E("v_readfirstlane_b32 s10, v1")
    E("v_and_b32 v1, 15, v0")
    E("v_lshrrev_b32 v2, 4, v0")
    E(f"s_mul_i32 s11, s8, {8*PART}")
    E("s_waitcnt lgkmcnt(0)")
    E("s_add_u32 s12, s6, s11")
    E("s_addc_u32 s13, s7, 0")
    E(f"s_mov_b32 s14, {8*PART}")
    E("s_mov_b32 s15, 0x20000")
    E("s_mov_b32 s16, s4")
    E("s_mov_b32 s17, s5")
    E(f"s_mov_b32 s18, {16*48*896*2}")
    E("s_mov_b32 s19, 0x20000")
    E("s_mul_i32 s20, s10, 10752")
    C("out scalar offset: b*86016 + isB*896 + w*224")
    E("s_and_b32 s21, s8, 15")
    E("s_mul_i32 s21, s21, 86016")
    E("s_lshr_b32 s22, s8, 4")
    E("s_mul_i32 s22, s22, 896")
    E("s_add_u32 s21, s21, s22")
    E("s_mul_i32 s22, s10, 224")
    E("s_add_u32 s21, s21, s22")
    E("v_mul_u32_u24 v3, 1792, v1")
    E("s_mov_b32 s30, 0xffff0000")
    E("s_cmp_ge_u32 s9, 9")
    E("s_cbranch_scc1 L_rsingle")
    def body(nd):
        for j in range(8):
            E(f"buffer_load_dwordx{nd} {vr(8+4*j, nd)}, v4, s[12:15], s20 offen")
            if j < 7: E(f"s_add_u32 s20, s20, {PART}")
        ACC = 40
        for j in range(8):
            E(f"s_waitcnt vmcnt({7-j})")
            for i in range(nd):
                if j == 0:
                    E(f"v_lshlrev_b32 v{ACC+2*i}, 16, v{8+i}")
                    E(f"v_and_b32 v{ACC+2*i+1}, s30, v{8+i}")
                else:
                    E(f"v_lshlrev_b32 v5, 16, v{8+4*j+i}")
                    E(f"v_and_b32 v6, s30, v{8+4*j+i}")
                    E(f"v_add_f32 v{ACC+2*i}, v{ACC+2*i}, v5")
                    E(f"v_add_f32 v{ACC+2*i+1}, v{ACC+2*i+1}, v6")
        for i in range(nd): E(f"v_cvt_pk_bf16_f32 v{48+i}, v{ACC+2*i}, v{ACC+2*i+1}")
    E("s_lshl_b32 s22, s9, 10")
    E("s_add_u32 s20, s20, s22")
    E("v_lshlrev_b32 v4, 4, v0")
    E("s_mul_i32 s23, s9, 86")
    E("s_lshr_b32 s23, s23, 8")
    E("s_mul_i32 s24, s23, 3")
    E("s_sub_u32 s24, s9, s24")
    E("s_lshl_b32 s23, s23, 6")
    E("s_mul_i32 s24, s24, 28672")
    E("s_add_u32 s21, s21, s23")
    E("s_add_u32 s21, s21, s24")
    E("v_and_b32 v5, 1, v2")
    E("v_lshl_add_u32 v3, v5, 5, v3")
    E("v_lshrrev_b32 v5, 1, v2")
    E("v_lshl_add_u32 v3, v5, 4, v3")
    body(4)
    E("s_nop 1")
    E("v_permlane16_swap_b32 v48, v50")
    E("v_permlane16_swap_b32 v49, v51")
    E("s_nop 1")
    E("buffer_store_dwordx4 v[48:51], v3, s[16:19], s21 offen")
    if STAMP:
        E("s_waitcnt vmcnt(0)")
        E("s_memrealtime s[34:35]")
        E("s_waitcnt lgkmcnt(0)")
        E("s_add_u32 s12, s6, 0x4020000")
        E("s_addc_u32 s13, s7, 0")
        E("s_mov_b32 s14, 0x100000")
        E("s_mov_b32 s15, 0x20000")
        E("s_lshl_b32 s20, s2, 2")
        E("s_add_u32 s20, s20, s10")
        E("s_lshl_b32 s20, s20, 3")
        E("v_mov_b32 v4, 0")
        E("v_mov_b32 v6, s32")
        E("v_mov_b32 v7, s34")
        E("v_cmp_eq_u32 vcc, 0, v0")
        E("s_and_saveexec_b64 s[36:37], vcc")
        E("buffer_store_dwordx2 v[6:7], v4, s[12:15], s20 offen")
    E("s_endpgm")
    LAB("L_rsingle")
    E("s_sub_u32 s24, s9, 9")
    E("s_lshl_b32 s22, s24, 9")
    E("s_add_u32 s20, s20, s22")
    E("s_add_u32 s20, s20, 9216")
    E("v_lshlrev_b32 v4, 3, v0")
    E("s_mul_i32 s24, s24, 28672")
    E("s_add_u32 s21, s21, s24")
    E("s_add_u32 s21, s21, 192")
    E("v_lshl_add_u32 v3, v2, 3, v3")
    body(2)
    E("s_nop 1")
    E("buffer_store_dwordx2 v[48:49], v3, s[16:19], s21 offen")
    LAB("L_rend")
    E("s_endpgm")

def main():
    L.append(f"; fused Q-proj + attention + O-proj (per head pair) and cross-head reduction; generated by exp/gen.py")
    if FUSE:
        L.append(f"; @launch grid=(256,1,1) block=(256,1,1) lds={LDS_TOTAL}")
    else:
        L.append(f"; @launch kernel={K1} grid=(256,1,1) block=(256,1,1) lds={LDS_TOTAL}")
        L.append(f"; @launch kernel={K2} grid=(384,1,1) block=(256,1,1) lds=0")
    L.append('.amdgcn_target "amdgcn-amd-amdhsa--gfx950"\n.text')
    L.append(f".globl {K1}\n.p2align 8\n.type {K1},@function\n{K1}:")
    setup()
    E(f"s_cmp_eq_u32 s{sISB}, 0")
    if opt.get("only") == "B": E("s_cbranch_scc1 L_end")
    if opt.get("only") == "A": E("s_cbranch_scc0 L_end")
    E("s_cbranch_scc1 L_pathA")
    path_B()
    LAB("L_pathA")
    path_A()
    LAB("L_end")
    E("s_endpgm")
    if not FUSE: reduce_kernel()
    kd(K1, 512, 256, 102)
    if not FUSE: kd(K2, 56, 56, 40)
    print("\n".join(L))
main()
```
